```python
import torch

def _softmax(x, axis=-1):
    return torch.softmax(x, dim=axis)
def _gelu(x):
    return torch.nn.functional.gelu(x, approximate="tanh")
def _silu(x):
    return torch.nn.functional.silu(x)
def _sigmoid(x):
    return torch.sigmoid(x)
def _layernorm(x, axis=-1, eps=1e-5):
    m = x.mean(dim=axis, keepdim=True)
    v = x.var(dim=axis, keepdim=True, unbiased=False)
    return (x - m) / torch.sqrt(v + eps)
def _scatter_add(tgt, idx, src, axis=0):
    return tgt.clone().index_add_(axis, idx, src)
def _segment_sum(src, seg, n):
    out = torch.zeros((n,) + src.shape[1:], dtype=src.dtype)
    return out.index_add_(0, seg, src)
def _pad(x, pw):
    flat = tuple(v for pair in reversed(pw) for v in pair)
    return torch.nn.functional.pad(x, flat)

kernel_name = 'standalone__dense_activation_gelu__prompt'

def setup_inputs():

    _w = (lambda a: (lambda t: t.to(torch.bfloat16) if t.is_floating_point() else t)(torch.as_tensor(a)))
    B, S, D, F = 1, 2048, 448, 1792
    return {
        "x": _w((lambda *s: torch.randn(*s, dtype=torch.bfloat16) * 0.05)(B, S, D)),
        "w1": _w((lambda *s: torch.randn(*s, dtype=torch.bfloat16) * 3.2)(D, F) * (D ** -0.5)),
        "b1": _w((lambda *s: torch.randn(*s, dtype=torch.bfloat16) * 3.2)(F) * 0.01),
        "w2": _w((lambda *s: torch.randn(*s, dtype=torch.bfloat16) * 0.05)(F, D) * (F ** -0.5)),
        "b2": _w((lambda *s: torch.randn(*s, dtype=torch.bfloat16) * 0.1)(D) * 0.01),
    }

def reference(x, w1, b1, w2, b2):
    h = torch.einsum("bsd,df->bsf", x, w1) + b1
    h = _gelu(h)
    return torch.einsum("bsf,fd->bsd", h, w2) + b2
```

```python
NAME = "standalone__dense_activation_gelu__prompt"
HEADER = """; Kernarg layout for this problem (64 bytes, ptrs only, base s[0:1]):
"""
class Asm:
    def __init__(self):
        self.lines = []
    def __call__(self, s):
        for l in s.strip("\n").split("\n"):
            self.lines.append("    " + l.strip() if not l.strip().endswith(":") else l.strip())
    def label(self, n): self.lines.append(n + ":")
    def comment(self, c): self.lines.append("    ; " + c)
    def text(self): return "\n".join(self.lines) + "\n"

def kernel_text(label, body, vgpr, sgpr=102, accum=None, extra_dirs=""):
    if accum is None: accum = min(256, (vgpr + 3)//4*4)
    return (f".text\n.globl {label}\n.p2align 8\n.type {label},@function\n{label}:\n" + body +
            f".section .rodata,\"a\"\n.p2align 6\n.amdhsa_kernel {label}\n"
            f"  .amdhsa_next_free_vgpr {vgpr}\n  .amdhsa_next_free_sgpr {sgpr}\n  .amdhsa_accum_offset {accum}\n"
            f"  .amdhsa_group_segment_fixed_size 0\n  .amdhsa_kernarg_size 64\n  .amdhsa_user_sgpr_count 2\n"
            f"  .amdhsa_user_sgpr_kernarg_segment_ptr 1\n  .amdhsa_system_sgpr_workgroup_id_x 1\n{extra_dirs}.end_amdhsa_kernel\n")

def file_text(launch_lines, kernels):
    return HEADER + "".join("; " + l + "\n" for l in launch_lines) + '.amdgcn_target "amdgcn-amd-amdhsa--gfx950"\n' + "".join(kernels)
```

```python
import sys, math, struct
from asmlib import *

def f32bits(x): return struct.unpack("<I", struct.pack("<f", x))[0]
C1 = -2.0*math.sqrt(2.0/math.pi)*math.log2(math.e)
C2 = C1*0.044715
FLAGOFF = 8<<20
STAMPOFF = 128<<20

def gen(out="k1.s", stamps=False, NWG=224, hst="sc1", ost="", codepf=True, pace=6):
    a = Asm()
    K = NAME + "_kernel"
    def stamp(n):
        if stamps: a(f"s_memtime s[{64+2*n}:{65+2*n}]")
    a(f"""
    s_cmp_ge_u32 s2, {NWG}
    s_cbranch_scc1 L_end
    s_load_dwordx2 s[4:5], s[0:1], 0
    s_load_dwordx2 s[8:9], s[0:1], 8
    s_load_dwordx2 s[12:13], s[0:1], 24
    s_load_dwordx2 s[16:17], s[0:1], 56
    s_load_dwordx2 s[20:21], s[0:1], 40
    s_load_dwordx2 s[24:25], s[0:1], 16
    s_load_dwordx2 s[28:29], s[0:1], 32
    s_load_dwordx2 s[32:33], s[0:1], 48
    """)
    if stamps: a("s_memrealtime s[62:63]")
    stamp(0)
    a(f"""
    v_lshrrev_b32 v1, 6, v0
    v_and_b32 v0, 63, v0                  ; lane
    s_and_b32 s40, s2, 7
    v_readfirstlane_b32 s3, v1            ; wave
    s_lshr_b32 s41, s2, 3                 ; slot 0..27
    s_cmp_ge_u32 s41, 14
    s_cselect_b32 s50, 1, 0
    s_mul_i32 s51, s50, 14
    s_sub_u32 s43, s41, s51               ; fj
    s_lshl_b32 s42, s40, 1
    s_add_u32 s42, s42, s50               ; mi
    s_mul_i32 s50, s41, 37
    s_lshr_b32 s50, s50, 8                ; slot/7
    s_mul_i32 s51, s50, 7
    s_sub_u32 s45, s41, s51               ; nj
    s_lshl_b32 s44, s40, 2
    s_add_u32 s44, s44, s50               ; mi2
    s_mul_i32 s50, s42, 3
    s_add_u32 s50, s50, s43
    s_mul_i32 s51, s50, 37
    s_lshr_b32 s51, s51, 8
    s_mul_i32 s51, s51, 7
    s_sub_u32 s46, s50, s51               ; rot1 = (fj+3mi)%7
    s_lshl_b32 s50, s44, 1
    s_add_u32 s50, s50, s45
    s_mul_i32 s51, s50, 37
    s_lshr_b32 s51, s51, 8
    s_mul_i32 s51, s51, 7
    s_sub_u32 s47, s50, s51               ; rot2 = (nj+2mi2)%7
    s_mov_b32 s6, 1835008
    s_mov_b32 s7, 0x20000
    s_mov_b32 s10, 1605632
    s_mov_b32 s11, 0x20000
    s_mov_b32 s14, 1605632
    s_mov_b32 s15, 0x20000
    s_mov_b32 s18, 0x10000000
    s_mov_b32 s19, 0x20000
    s_mov_b32 s22, 1835008
    s_mov_b32 s23, 0x20000
    s_mov_b32 s26, 3584
    s_mov_b32 s27, 0x20000
    s_mov_b32 s30, 896
    s_mov_b32 s31, 0x20000
    s_mov_b32 s34, 256
    s_mov_b32 s35, 0x20000
    s_cmp_lt_u32 s3, 4
    s_cbranch_scc1 L_compute
    """)
    a(f"""
    s_sub_u32 s3, s3, 4                   ; lw
    v_lshrrev_b32 v1, 3, v0               ; l>>3
    v_lshrrev_b32 v2, 4, v0               ; l>>4
    v_and_b32 v3, 7, v0                   ; l&7
    v_and_b32 v4, 15, v0                  ; l&15
    s_lshl_b32 s50, s42, 7
    s_lshl_b32 s51, s3, 5
    s_add_u32 s50, s50, s51
    v_add_u32 v5, s50, v1
    v_mul_u32_u24 v5, 896, v5
    v_xor_b32 v6, v3, v2
    v_lshl_add_u32 v10, v6, 4, v5
    v_xor_b32 v6, 4, v6
    v_lshl_add_u32 v11, v6, 4, v5
    v_add_u32 v11, {8*896-1024}, v11
    v_add_u32 v12, {16*896-2048}, v10
    v_add_u32 v13, {16*896-2048}, v11
    s_lshl_b32 s50, s3, 4
    v_add_u32 v5, s50, v2
    v_mul_u32_u24 v5, 3584, v5
    v_lshlrev_b32 v6, 2, v2
    v_xor_b32 v6, v6, v4
    v_lshl_add_u32 v14, v6, 4, v5
    s_lshl_b32 s50, s43, 8
    v_add_u32 v14, s50, v14
    v_add_u32 v15, {4*3584-1024}, v14
    v_add_u32 v16, {2*(4*3584-1024)}, v14
    v_add_u32 v17, {3*(4*3584-1024)}, v14
    s_lshl_b32 s50, s3, 5
    v_add_u32 v5, s50, v1
    v_mul_u32_u24 v5, 896, v5
    v_and_b32 v6, 1, v2
    v_lshlrev_b32 v6, 2, v6
    v_xor_b32 v6, v6, v3
    v_lshl_add_u32 v18, v6, 4, v5
    s_lshl_b32 s50, s45, 7
    v_add_u32 v18, s50, v18
    v_add_u32 v19, {8*896-1024}, v18
    v_add_u32 v20, {2*(8*896-1024)}, v18
    v_add_u32 v21, {3*(8*896-1024)}, v18
    s_lshl_b32 s52, s3, 12
    s_mov_b32 s53, s46
    s_mov_b32 s54, 0
    s_mov_b32 s55, 0
    s_waitcnt lgkmcnt(0)
    """)
    stamp(1)
    a(f"""
    s_or_b32 s50, s2, s3
    s_cmp_lg_u32 s50, 0
    s_cbranch_scc1 L_ld_loop
    s_memrealtime s[56:57]
    v_mov_b32 v5, 0
    s_waitcnt lgkmcnt(0)
    s_or_b32 s56, s56, 1
    v_mov_b32 v6, s56
    v_mov_b32 v7, s57
    s_mov_b64 exec, 1
    buffer_store_dwordx2 v[6:7], v5, s[32:35], 0 offen sc1
    s_mov_b64 exec, -1
    """)
    a.label("L_ld_loop")
    a(f"""
    s_lshl_b32 s50, s53, 7                ; x soffset
    s_mul_i32 s51, s53, {64*3584}         ; w1 soffset
    s_mov_b32 m0, s52
    s_add_u32 s53, s53, 1
    buffer_load_dwordx4 v10, s[4:7], s50 offen lds
    buffer_load_dwordx4 v11, s[4:7], s50 offen offset:1024 lds
    buffer_load_dwordx4 v12, s[4:7], s50 offen offset:2048 lds
    buffer_load_dwordx4 v13, s[4:7], s50 offen offset:3072 lds
    s_add_u32 m0, s52, 16384
    s_cmp_eq_u32 s53, 7
    s_cselect_b32 s53, 0, s53
    buffer_load_dwordx4 v14, s[8:11], s51 offen lds
    buffer_load_dwordx4 v15, s[8:11], s51 offen offset:1024 lds
    buffer_load_dwordx4 v16, s[8:11], s51 offen offset:2048 lds
    buffer_load_dwordx4 v17, s[8:11], s51 offen offset:3072 lds
    s_add_u32 s52, s52, 32768
    s_add_u32 s55, s55, 1
    s_cmp_eq_u32 s55, 3
    s_cbranch_scc0 L_ld_nowrap
    s_mov_b32 s55, 0
    s_sub_u32 s52, s52, 98304
    L_ld_nowrap:
    s_add_u32 s54, s54, 1
    s_cmp_eq_u32 s54, 1
    s_cbranch_scc1 L_ld_loop
    s_waitcnt vmcnt(8)
    s_barrier                              ; B_(issued-2)
    s_cmp_lt_u32 s54, 7
    s_cbranch_scc1 L_ld_loop
    """)
    a(f"""
    s_mov_b32 s53, s47
    s_mov_b32 s54, 0                      ; j
    s_lshl_b32 s58, s3, 12
    """)
    a.label("L_w2_loop")
    a(f"""
    s_lshl_b32 s50, s54, 2
    s_lshr_b32 s50, 0x8604286, s50
    s_and_b32 s50, s50, 15
    s_lshl_b32 s50, s50, 14
    s_add_u32 s52, s50, s58
    s_mul_i32 s50, s53, {128*896}
    s_add_u32 s51, s50, {7*128*896}       ; wk=1
    s_mov_b32 m0, s52
    s_add_u32 s53, s53, 1
    """)
    def paced(ins):
        for x in ins:
            a(f"s_waitcnt vmcnt({pace})")
            a(x)
    l1 = ["buffer_load_dwordx4 v18, s[12:15], s50 offen lds",
          "buffer_load_dwordx4 v19, s[12:15], s50 offen offset:1024 lds",
          "buffer_load_dwordx4 v20, s[12:15], s50 offen offset:2048 lds",
          "buffer_load_dwordx4 v21, s[12:15], s50 offen offset:3072 lds"]
    paced(l1)
    a("""
    s_add_u32 m0, s52, 16384
    s_cmp_eq_u32 s53, 7
    s_cselect_b32 s53, 0, s53
    """)
    paced([x.replace("s50","s51") for x in l1])
    a(f"""
    s_add_u32 s54, s54, 1
    s_cmp_gt_u32 s54, 2
    s_cbranch_scc1 L_w2_a
    s_waitcnt vmcnt(8)
    s_barrier
    s_branch L_w2_loop
    L_w2_a:
    s_cmp_eq_u32 s54, 5
    s_cbranch_scc1 L_w2_mid
    s_cmp_lt_u32 s54, 7
    s_cbranch_scc1 L_w2_loop
    s_waitcnt vmcnt(0)
    s_barrier                              ; B_10
    """)
    stamp(4)
    a("s_branch L_fin" if stamps else "s_endpgm")
    a.label("L_w2_mid")
    stamp(2)
    a(f"""
    s_cmp_lg_u32 s3, 0
    s_cbranch_scc1 L_nopoll
    s_mov_b32 s59, 0
    v_mov_b32 v5, 0
    L_tagpoll:
    buffer_load_dwordx2 v[6:7], v5, s[32:35], 0 offen sc1
    s_add_u32 s59, s59, 1
    s_waitcnt vmcnt(0)
    v_readfirstlane_b32 s56, v6
    v_readfirstlane_b32 s57, v7
    s_cmp_gt_u32 s59, 0x40000
    s_cbranch_scc1 L_nopoll
    s_cmp_eq_u32 s56, 0
    s_cbranch_scc1 L_tagpoll
    v_min_u32 v5, 27, v0
    v_lshlrev_b32 v5, 3, v5
    s_lshl_b32 s50, s44, 8
    s_add_u32 s50, s50, {FLAGOFF}
    L_poll:
    buffer_load_dwordx2 v[6:7], v5, s[16:19], s50 offen sc1
    s_add_u32 s59, s59, 1
    s_waitcnt vmcnt(0)
    v_cmp_ne_u64 vcc, s[56:57], v[6:7]
    s_cmp_gt_u32 s59, 0x40000
    s_cbranch_scc1 L_nopoll
    s_cbranch_vccnz L_poll
    L_nopoll:
    s_waitcnt vmcnt(0)
    s_barrier                              ; B_8
    """)
    stamp(3)
    a("""
    s_barrier                              ; B_9
    s_branch L_w2_loop
    """)
    a.label("L_compute")
    a(f"""
    s_and_b32 s48, s3, 1                  ; wm
    s_lshr_b32 s49, s3, 1
    v_and_b32 v1, 31, v0                  ; l&31
    v_lshrrev_b32 v2, 5, v0               ; hi
    v_and_b32 v3, 15, v0                  ; i
    v_lshrrev_b32 v4, 4, v0               ; q
    """)
    if codepf:
        a(f"""
        s_getpc_b64 s[56:57]
        v_lshlrev_b32 v5, 7, v0
        v_min_u32 v5, L_code_end-L_compute-64, v5
        global_load_dword v31, v5, s[56:57]
        """)
    a(f"""
    s_lshl_b32 s50, s43, 8
    s_lshl_b32 s51, s49, 7
    s_add_u32 s50, s50, s51
    v_lshlrev_b32 v5, 3, v2
    s_waitcnt lgkmcnt(0)
    """)
    stamp(1)
    for tf in range(2):
        for g in range(4):
            r = 32 + 8*tf + 2*g
            a(f"buffer_load_dwordx2 v[{r}:{r+1}], v5, s[24:27], s50 offen offset:{64*tf+16*g}")
    a(f"""
    s_lshl_b32 s50, s45, 7
    s_lshl_b32 s51, s49, 6
    s_add_u32 s50, s50, s51
    """)
    for g in range(4):
        a(f"buffer_load_dwordx2 v[{128+2*g}:{129+2*g}], v5, s[28:31], s50 offen offset:{16*g}")
    a(f"""
    s_lshl_b32 s50, s48, 13
    v_lshlrev_b32 v6, 7, v1
    v_add_u32 v6, s50, v6
    v_bfe_u32 v10, v1, 1, 3
    v_xor_b32 v10, v10, v2
    v_lshl_add_u32 v6, v10, 4, v6
    v_xor_b32 v7, 32, v6
    v_xor_b32 v8, 64, v6
    v_xor_b32 v9, 96, v6
    v_lshrrev_b32 v12, 2, v3              ; i>>2
    v_lshl_add_u32 v13, v2, 3, v12
    v_lshlrev_b32 v13, 8, v13
    v_and_b32 v14, 1, v4                  ; nh
    v_lshl_add_u32 v13, v14, 5, v13
    v_and_b32 v15, 3, v3
    v_lshl_add_u32 v13, v15, 3, v13
    v_add_u32 v13, 16384, v13
    s_lshl_b32 s50, s49, 1
    v_xor_b32 v10, s50, v12
    v_lshl_add_u32 v10, v10, 6, v13
    v_xor_b32 v11, 64, v10
    v_lshl_add_u32 v16, v2, 2, v12
    v_lshlrev_b32 v16, 7, v16
    v_lshl_add_u32 v16, v14, 5, v16
    v_lshl_add_u32 v16, v15, 3, v16
    v_lshrrev_b32 v17, 3, v3
    v_lshl_add_u32 v12, v17, 6, v16
    s_lshl_b32 s50, s49, 14
    v_add_u32 v12, s50, v12
    v_xor_b32 v13, 64, v12
    ; lane*16
    v_lshlrev_b32 v14, 4, v0
    s_waitcnt vmcnt(4)
    """)
    for tf in range(2):
        for g in range(4):
            for d in range(2):
                src = 32 + 8*tf + 2*g + d
                r0 = 64 + 32*tf + 4*g + 2*d
                a(f"v_lshlrev_b32 v{r0}, 16, v{src}")
                a(f"v_and_b32 v{r0+1}, 0xffff0000, v{src}")
                a(f"v_lshlrev_b32 v{r0+16}, 16, v{src}")
                a(f"v_and_b32 v{r0+17}, 0xffff0000, v{src}")
    def reads1(s, base):
        a(f"ds_read_b128 v[{base}:{base+3}], v{6+s}")
        a(f"ds_read_b64_tr_b16 v[{base+8}:{base+9}], v10 offset:{(16*s)*256}")
        a(f"ds_read_b64_tr_b16 v[{base+10}:{base+11}], v10 offset:{(16*s+4)*256}")
        a(f"ds_read_b128 v[{base+4}:{base+7}], v{6+s} offset:4096")
        a(f"ds_read_b64_tr_b16 v[{base+12}:{base+13}], v11 offset:{(16*s)*256}")
        a(f"ds_read_b64_tr_b16 v[{base+14}:{base+15}], v11 offset:{(16*s+4)*256}")
    def mfma1(base):
        for tf in range(2):
            for tm in range(2):
                acc = 64 + 32*tf + 16*tm
                a(f"v_mfma_f32_32x32x16_bf16 v[{acc}:{acc+15}], v[{base+8+4*tf}:{base+11+4*tf}], v[{base+4*tm}:{base+3+4*tm}], v[{acc}:{acc+15}]")
    A, B = 32, 48
    a("""
    s_mov_b32 s54, 0
    s_mov_b32 s55, 0
    s_mov_b32 s60, 32768
    s_barrier                              ; B_0
    """)
    stamp(2)
    reads1(0, A)
    a.label("L_k1")
    reads1(1, B); a("s_waitcnt lgkmcnt(6)"); mfma1(A)
    reads1(2, A); a("s_waitcnt lgkmcnt(6)"); mfma1(B)
    reads1(3, B); a("s_waitcnt lgkmcnt(6)"); mfma1(A)
    a(f"""
    s_add_u32 s55, s55, 1
    s_cmp_eq_u32 s55, 3
    s_cselect_b32 s50, -65536, s60
    s_cselect_b32 s55, 0, s55
    v_add_u32 v6, s50, v6
    v_add_u32 v7, s50, v7
    v_add_u32 v8, s50, v8
    v_add_u32 v9, s50, v9
    v_add_u32 v10, s50, v10
    v_add_u32 v11, s50, v11
    s_add_u32 s54, s54, 1
    s_waitcnt lgkmcnt(0)
    s_barrier                              ; B_(c+1)
    """)
    reads1(0, A)
    mfma1(B)
    a("""
    s_cmp_lt_u32 s54, 7
    s_cbranch_scc1 L_k1
    """)
    stamp(3)
    a(f"""
    v_mov_b32 v5, 0
    buffer_load_dwordx2 v[30:31], v5, s[32:35], 0 offen sc1     ; tag
    s_mov_b32 s56, {f32bits(C2):#x}
    s_mov_b32 s57, {f32bits(C1):#x}
    s_lshl_b32 s50, s42, 2
    s_lshl_b32 s51, s48, 1
    s_add_u32 s50, s50, s51
    s_mul_i32 s50, s50, 112
    s_lshl_b32 s51, s43, 3
    s_add_u32 s50, s50, s51
    s_lshl_b32 s51, s49, 2
    s_add_u32 s50, s50, s51
    s_lshl_b32 s50, s50, 10
    s_add_u32 s51, s50, {112*1024}
    s_waitcnt lgkmcnt(0)
    s_nop 7
    """)
    grp = 0
    for tf in range(2):
        for tm in range(2):
            for half in range(2):
                x0 = 64 + 32*tf + 16*tm + 8*half
                T = 32 + 8*(grp & 1)
                O = 48 + 4*(grp & 3)
                for p in range(4):
                    a(f"v_pk_mul_f32 v[{T+2*p}:{T+2*p+1}], v[{x0+2*p}:{x0+2*p+1}], v[{x0+2*p}:{x0+2*p+1}]")
                for p in range(4):
                    a(f"v_pk_fma_f32 v[{T+2*p}:{T+2*p+1}], v[{T+2*p}:{T+2*p+1}], s[56:57], s[56:57] op_sel:[0,0,1] op_sel_hi:[1,0,1]")
                for p in range(4):
                    a(f"v_pk_mul_f32 v[{T+2*p}:{T+2*p+1}], v[{T+2*p}:{T+2*p+1}], v[{x0+2*p}:{x0+2*p+1}]")
                for e in range(8):
                    a(f"v_exp_f32 v{T+e}, v{T+e}")
                for p in range(4):
                    a(f"v_pk_add_f32 v[{T+2*p}:{T+2*p+1}], v[{T+2*p}:{T+2*p+1}], 1.0 op_sel_hi:[1,0]")
                for e in range(8):
                    a(f"v_rcp_f32 v{T+e}, v{T+e}")
                for p in range(4):
                    a(f"v_pk_mul_f32 v[{T+2*p}:{T+2*p+1}], v[{T+2*p}:{T+2*p+1}], v[{x0+2*p}:{x0+2*p+1}]")
                for p in range(4):
                    a(f"v_cvt_pk_bf16_f32 v{O+p}, v{T+2*p}, v{T+2*p+1}")
                so = "s50" if tm == 0 else "s51"
                a(f"buffer_store_dwordx4 v[{O}:{O+3}], v14, s[16:19], {so} offen offset:{(2*tf+half)*1024} {hst}")
                grp += 1
    stamp(4)
    a(f"""
    s_cmp_eq_u32 s49, 0
    s_cselect_b32 s52, -1, 0
    s_cselect_b32 s53, 0, -1
    """)
    for g in range(4):
        for d in range(2):
            src = 128 + 2*g + d
            r0 = 64 + 4*g + 2*d
            a(f"v_lshlrev_b32 v32, 16, v{src}")
            a(f"v_and_b32 v33, 0xffff0000, v{src}")
            a(f"v_and_b32 v{r0}, s52, v32")
            a(f"v_and_b32 v{r0+1}, s52, v33")
            a(f"v_and_b32 v{r0+16}, s53, v32")
            a(f"v_and_b32 v{r0+17}, s53, v33")
    a(f"""
    s_lshl_b32 s50, s42, 1
    s_add_u32 s50, s50, s48
    s_lshl_b32 s50, s50, 8
    s_lshl_b32 s51, s43, 1
    s_add_u32 s51, s51, s49
    s_lshl_b32 s51, s51, 3
    s_add_u32 s50, s50, s51
    s_add_u32 s50, s50, {FLAGOFF}
    s_mov_b32 s59, 0
    L_tagc:
    s_waitcnt vmcnt(0)
    v_readfirstlane_b32 s58, v30
    s_add_u32 s59, s59, 1
    s_cmp_gt_u32 s59, 0x40000
    s_cbranch_scc1 L_tagok
    s_cmp_lg_u32 s58, 0
    s_cbranch_scc1 L_tagok
    buffer_load_dwordx2 v[30:31], v5, s[32:35], 0 offen sc1
    s_branch L_tagc
    L_tagok:
    s_mov_b64 exec, 1
    buffer_store_dwordx2 v[30:31], v5, s[16:19], s50 offen sc1
    s_mov_b64 exec, -1
    """)
    stamp(5)
    a(f"""
    s_lshl_b32 s50, s44, 1
    s_add_u32 s50, s50, s48
    s_mul_i32 s50, s50, 112
    s_mul_i32 s51, s49, 56
    s_add_u32 s50, s50, s51
    s_lshl_b32 s50, s50, 10
    v_add_u32 v15, s50, v14
    v_add_u32 v16, 4096, v15
    s_mov_b32 s53, s47
    s_lshl_b32 s50, s53, 13
    s_mov_b32 s54, 0                      ; j
    v_add_u32 v10, {6*16384}, v12
    v_add_u32 v11, {6*16384}, v13
    s_barrier                              ; B_8
    """)
    stamp(6)
    H = 96
    def hload(s, so):
        va = "v15" if s < 4 else "v16"
        a(f"buffer_load_dwordx4 v[{H+4*s}:{H+4*s+3}], {va}, s[16:19], {so} offen offset:{1024*(s&3)} sc1")
    def reads2(s, base):
        a(f"ds_read_b64_tr_b16 v[{base}:{base+1}], v10 offset:{(16*s)*128}")
        a(f"ds_read_b64_tr_b16 v[{base+2}:{base+3}], v10 offset:{(16*s+8)*128}")
        a(f"ds_read_b64_tr_b16 v[{base+4}:{base+5}], v11 offset:{(16*s)*128}")
        a(f"ds_read_b64_tr_b16 v[{base+6}:{base+7}], v11 offset:{(16*s+8)*128}")
    def mfma2(s, base):
        for t in range(2):
            acc = 64 + 16*t
            a(f"v_mfma_f32_32x32x16_bf16 v[{acc}:{acc+15}], v[{base+4*t}:{base+3+4*t}], v[{H+4*s}:{H+4*s+3}], v[{acc}:{acc+15}]")
    for s in range(8): hload(s, "s50")
    reads2(0, 32)
    a.label("L_k2")
    a(f"""
    s_add_u32 s53, s53, 1
    s_cmp_eq_u32 s53, 7
    s_cselect_b32 s53, 0, s53
    s_lshl_b32 s50, s53, 13
    s_add_u32 s54, s54, 1
    s_cmp_eq_u32 s54, 7
    s_cselect_b32 s50, 0x20000000, s50
    """)
    for s in range(8):
        cur = 32 + 8*(s & 1); nxt = 32 + 8*((s+1) & 1)
        if s < 7:
            reads2(s+1, nxt)
            a("s_waitcnt vmcnt(7) lgkmcnt(4)")
        else:
            a(f"""
            s_lshl_b32 s51, s54, 2
            s_lshr_b32 s51, 0x08604286, s51
            s_and_b32 s51, s51, 15
            s_lshl_b32 s51, s51, 14
            v_add_u32 v10, s51, v12
            v_add_u32 v11, s51, v13
            s_waitcnt vmcnt(7) lgkmcnt(0)
            s_cmp_eq_u32 s54, 2
            s_cbranch_scc1 L_k2_bar
            s_cmp_eq_u32 s54, 5
            s_cbranch_scc0 L_k2_nobar
            L_k2_bar:
            s_barrier
            L_k2_nobar:
            """)
            reads2(0, nxt)
        mfma2(s, cur)
        hload(s, "s50")
    a("""
    s_cmp_lt_u32 s54, 7
    s_cbranch_scc1 L_k2
    """)
    stamp(7)
    a(f"""
    s_lshl_b32 s50, s3, 12
    v_add_u32 v6, s50, v14
    v_xor_b32 v7, 8192, v6
    s_cmp_eq_u32 s49, 0
    s_waitcnt lgkmcnt(0)
    s_nop 7
    s_nop 3
    s_cbranch_scc1 L_red0
    """)
    def red(keep, send):
        for g in range(4):
            a(f"ds_write_b128 v6, v[{send+4*g}:{send+4*g+3}] offset:{1024*g}")
        a("s_waitcnt lgkmcnt(0)\ns_barrier")
        for g in range(4):
            a(f"ds_read_b128 v[{32+4*g}:{35+4*g}], v7 offset:{1024*g}")
        for g in range(4):
            a(f"s_waitcnt lgkmcnt({3-g})")
            a(f"v_pk_add_f32 v[{32+4*g}:{33+4*g}], v[{32+4*g}:{33+4*g}], v[{keep+4*g}:{keep+4*g+1}]")
            a(f"v_pk_add_f32 v[{34+4*g}:{35+4*g}], v[{34+4*g}:{35+4*g}], v[{keep+4*g+2}:{keep+4*g+3}]")
    red(80, 64)
    a("s_branch L_red1")
    a.label("L_red0")
    red(64, 80)
    a.label("L_red1")
    for g in range(4):
        a(f"v_cvt_pk_bf16_f32 v{48+2*g}, v{32+4*g}, v{33+4*g}")
        a(f"v_cvt_pk_bf16_f32 v{49+2*g}, v{34+4*g}, v{35+4*g}")
    a(f"""
    s_lshl_b32 s50, s44, 6
    s_lshl_b32 s51, s48, 5
    s_add_u32 s50, s50, s51
    v_add_u32 v6, s50, v1
    v_mul_u32_u24 v6, 896, v6
    v_lshl_add_u32 v6, v2, 4, v6
    s_lshl_b32 s50, s45, 7
    s_lshl_b32 s51, s49, 6
    s_add_u32 s50, s50, s51
    v_permlane32_swap_b32 v48, v50
    v_permlane32_swap_b32 v49, v51
    v_permlane32_swap_b32 v52, v54
    v_permlane32_swap_b32 v53, v55
    s_nop 1
    buffer_store_dwordx4 v[48:51], v6, s[20:23], s50 offen {ost}
    buffer_store_dwordx4 v[52:55], v6, s[20:23], s50 offen offset:32 {ost}
    """)
    if stamps:
        a("s_waitcnt vmcnt(0)")
        stamp(8)
        a("s_add_u32 s3, s3, 252")
        a.label("L_fin")
        a(f"""
        s_memrealtime s[82:83]
        s_add_u32 s3, s3, 4
        s_and_b32 s3, s3, 7
        s_lshl_b32 s50, s2, 3
        s_add_u32 s50, s50, s3
        s_lshl_b32 s50, s50, 7
        s_add_u32 s50, s50, {STAMPOFF}
        v_mov_b32 v20, s50
        s_waitcnt lgkmcnt(0)
        """)
        for i in range(11):
            r = 62 + 2*i
            a(f"v_mov_b32 v22, s{r}\nv_mov_b32 v23, s{r+1}\nbuffer_store_dwordx2 v[22:23], v20, s[16:19], 0 offen offset:{8*i}\ns_nop 1")
    a.label("L_end")
    a("s_endpgm")
    a.label("L_code_end")
    t = file_text([f"@launch grid=({NWG},1,1) block=(512,1,1) lds=163840"], [kernel_text(K, a.text(), 136)])
    open(out, "w").write(t)

if __name__ == "__main__":
    kw = dict(x.split("=") for x in sys.argv[1:])
    for k in ("stamps","codepf"):
        if k in kw: kw[k] = kw[k] == "1"
    for k in ("pace",):
        if k in kw: kw[k] = int(kw[k])
    gen(**kw)
```

```python
import sys, math, struct
from asmlib import *

def f32bits(x): return struct.unpack("<I", struct.pack("<f", x))[0]
C1 = -2.0*math.sqrt(2.0/math.pi)*math.log2(math.e)
C2 = C1*0.044715
FLAGOFF = 8<<20
PRES    = (8<<20) + 65536
XOFF    = 9<<20
STAMPOFF = 128<<20
SPIN = 0x40000
W2LDS = 3*16384

def gen(out="k6.s", stamps=False, NWG=224, ost="", codepf=True, pace=5, pace1=7, ldf="", xsleep=2, prio=2, pre=16, drain=20, k1st=False, fs=5, tlb=0, fast=0, wb=0):
    a = Asm()
    K = NAME + "_kernel"
    ldf = ldf.replace("_"," "); ost = ost.replace("_"," ")
    def stamp(n):
        if stamps and not (k1st and n >= 4): a(f"s_memtime s[{64+2*n}:{65+2*n}]")
    def mod7(dst, src, tmp):
        a(f"s_mul_i32 {tmp}, {src}, 37\ns_lshr_b32 {tmp}, {tmp}, 8\ns_mul_i32 {tmp}, {tmp}, 7\ns_sub_u32 {dst}, {src}, {tmp}")
    a(f"""
    s_cmp_ge_u32 s2, {NWG}
    s_cbranch_scc1 L_end
    s_load_dwordx2 s[4:5], s[0:1], 0
    s_load_dwordx2 s[8:9], s[0:1], 8
    s_load_dwordx2 s[12:13], s[0:1], 24
    s_load_dwordx2 s[16:17], s[0:1], 56
    s_load_dwordx2 s[20:21], s[0:1], 40
    s_load_dwordx2 s[24:25], s[0:1], 16
    s_load_dwordx2 s[28:29], s[0:1], 32
    s_load_dwordx2 s[32:33], s[0:1], 48
    """)
    if stamps: a("s_memrealtime s[62:63]")
    stamp(0)
    a(f"""
    v_lshrrev_b32 v1, 6, v0
    v_and_b32 v0, 63, v0                  ; lane
    s_and_b32 s40, s2, 7                  ; g8
    v_readfirstlane_b32 s3, v1            ; wave
    s_lshr_b32 s41, s2, 3                 ; slot 0..27
    s_and_b32 s36, s40, 1                 ; xf
    s_lshr_b32 s37, s40, 1                ; xm
    s_mul_i32 s44, s41, 37
    s_lshr_b32 s44, s44, 8
    s_mul_i32 s51, s44, 7
    s_sub_u32 s45, s41, s51               ; e
    s_lshl_b32 s42, s37, 2
    s_add_u32 s42, s42, s44               ; mi
    s_mul_i32 s43, s36, 7
    s_add_u32 s43, s43, s45               ; fj
    s_and_b32 s94, s3, 3                  ; r
    s_mov_b32 s6, 1835008
    s_mov_b32 s7, 0x20000
    s_mov_b32 s10, 1605632
    s_mov_b32 s11, 0x20000
    s_mov_b32 s14, 1605632
    s_mov_b32 s15, 0x20000
    s_mov_b32 s18, 0x10000000
    s_mov_b32 s19, 0x20000
    s_mov_b32 s34, 256
    s_mov_b32 s35, 0x20000
    s_cmp_lt_u32 s3, 4
    s_cbranch_scc1 L_compute
    """)
    a(f"""
    s_lshl_b32 s50, s44, 1
    s_add_u32 s50, s50, s37
    s_cmp_ge_u32 s50, 6
    s_cselect_b32 s51, 5, -1
    s_sub_u32 s47, s50, s51               ; rotw = 1 + (2ml+xm)%6
    s_add_u32 s50, s50, s45
    s_mul_i32 s51, s36, 3
    s_add_u32 s50, s50, s51
    """)
    mod7("s53", "s50", "s51")
    a(f"""
    v_lshrrev_b32 v1, 3, v0               ; l>>3
    v_lshrrev_b32 v2, 4, v0               ; l>>4
    v_and_b32 v3, 7, v0                   ; l&7
    v_and_b32 v4, 15, v0                  ; l&15
    s_xor_b32 s51, s36, 1
    s_lshl_b32 s51, s51, 1
    s_xor_b32 s51, s51, s94
    s_lshl_b32 s51, s51, 5
    s_lshl_b32 s50, s42, 7
    s_add_u32 s50, s50, s51
    v_add_u32 v5, s50, v1
    v_mul_u32_u24 v5, 896, v5
    v_xor_b32 v6, v3, v2
    v_lshl_add_u32 v20, v6, 4, v5
    v_xor_b32 v6, 4, v6
    v_lshl_add_u32 v21, v6, 4, v5
    v_add_u32 v21, {8*896-1024}, v21
    v_add_u32 v22, {16*896-2048}, v20
    v_add_u32 v23, {16*896-2048}, v21
    s_lshl_b32 s50, s94, 4
    v_add_u32 v5, s50, v2
    v_mul_u32_u24 v5, 3584, v5
    v_lshlrev_b32 v6, 2, v2
    v_xor_b32 v6, v6, v4
    v_lshl_add_u32 v24, v6, 4, v5
    s_lshl_b32 s50, s43, 8
    v_add_u32 v24, s50, v24
    v_add_u32 v25, {4*3584-1024}, v24
    v_add_u32 v26, {2*(4*3584-1024)}, v24
    v_add_u32 v27, {3*(4*3584-1024)}, v24
    s_lshl_b32 s58, s94, 12               ; r*4096
    s_mov_b32 s52, 0
    s_mov_b32 s54, 0
    s_waitcnt lgkmcnt(0)
    """)
    stamp(1)
    a.label("L_ld_loop")
    a(f"""
    s_lshl_b32 s50, s53, 7                ; x soffset
    s_mul_i32 s51, s53, {64*3584}         ; w1 soffset
    s_add_u32 m0, s52, s58
    s_add_u32 s53, s53, 1
    """)
    lds = [f"buffer_load_dwordx4 v{20+i}, s[4:7], s50 offen offset:{1024*i} {ldf} lds" for i in range(4)] + \
          [f"buffer_load_dwordx4 v{24+i}, s[8:11], s51 offen offset:{1024*i} {ldf} lds" for i in range(4)]
    for i, ins in enumerate(lds):
        a(f"s_waitcnt vmcnt({pace1})")
        if i == pace1:
            a("s_cmp_eq_u32 s54, 0\ns_cbranch_scc1 L_ld_nb")
            if stamps:
                for c, n in ((1,11),(2,12),(6,13)):
                    a(f"s_cmp_eq_u32 s54, {c}\ns_cbranch_scc0 L_st{c}\ns_memtime s[{64+2*n}:{65+2*n}]\nL_st{c}:")
            a("s_barrier                              ; B_(issued-1)\nL_ld_nb:")
        if i == 4:
            a("s_add_u32 m0, m0, 16384\ns_cmp_eq_u32 s53, 7\ns_cselect_b32 s53, 0, s53")
        a(ins)
    a(f"""
    s_cmp_eq_u32 s52, 0
    s_cselect_b32 s52, 98304, s52
    s_sub_u32 s52, s52, 32768
    s_add_u32 s54, s54, 1
    s_cmp_lt_u32 s54, 7
    s_cbranch_scc1 L_ld_loop
    s_lshl_b32 s50, s94, 5
    v_add_u32 v5, s50, v1
    v_mul_u32_u24 v5, 896, v5
    v_and_b32 v6, 1, v2
    v_lshlrev_b32 v6, 2, v6
    v_xor_b32 v6, v6, v3
    v_lshl_add_u32 v20, v6, 4, v5
    s_lshl_b32 s50, s45, 7
    s_mul_i32 s51, s36, {896*896}
    s_add_u32 s50, s50, s51
    v_add_u32 v20, s50, v20
    v_add_u32 v21, {8*896-1024}, v20
    v_add_u32 v22, {2*(8*896-1024)}, v20
    v_add_u32 v23, {3*(8*896-1024)}, v20
    s_mov_b32 s53, s47
    s_mov_b32 s54, 0
    s_add_u32 s58, s58, {W2LDS}
    """)
    a.label("L_w2_loop")
    a(f"""
    s_lshl_b32 s50, s53, 14
    s_add_u32 m0, s50, s58
    s_mul_i32 s50, s53, {128*896}
    s_add_u32 s53, s53, 1
    s_cmp_eq_u32 s53, 7
    s_cselect_b32 s53, 0, s53
    """)
    for i in range(4):
        a(f"s_waitcnt vmcnt({pace})")
        a(f"buffer_load_dwordx4 v{20+i}, s[12:15], s50 offen offset:{1024*i} {ldf} lds")
    a(f"""
    s_add_u32 s54, s54, 1
    s_cmp_eq_u32 s54, 1
    s_cbranch_scc0 L_w2_a
    s_waitcnt vmcnt(4)
    s_barrier                              ; B_6
    L_w2_a:
    s_cmp_lt_u32 s54, 7
    s_cbranch_scc1 L_w2_loop
    s_mov_b32 s60, 0
    """)
    stamp(2)
    a("s_branch L_common")
    a.label("L_compute")
    if codepf:
        a(f"""
        s_lshr_b32 s50, s3, 1
        s_or_b32 s50, s50, s45
        s_cmp_lg_u32 s50, 0
        s_cbranch_scc1 L_nocpf
        s_getpc_b64 s[56:57]
        s_lshl_b32 s50, s3, 13
        v_lshlrev_b32 v5, 7, v0
        v_add_u32 v5, s50, v5
        v_min_u32 v5, L_code_end-L_compute-128, v5
        global_load_dword v31, v5, s[56:57]
        L_nocpf:
        """)
    a("s_mov_b32 s60, 1")
    a.label("L_common")
    a(f"""
    s_and_b32 s48, s3, 1                  ; tm
    s_bfe_u32 s49, s3, 0x10001
    s_xor_b32 s61, s60, s36
    s_xor_b32 s61, s61, 1
    s_lshl_b32 s38, s40, 2
    s_add_u32 s38, s38, s44               ; team
    s_mov_b32 s59, 0
    v_and_b32 v1, 31, v0                  ; l&31
    v_lshrrev_b32 v2, 5, v0               ; hi
    v_and_b32 v3, 15, v0                  ; i
    v_lshrrev_b32 v4, 4, v0               ; q
    v_lshlrev_b32 v14, 4, v0              ; lane*16
    v_lshrrev_b32 v18, 2, v3              ; i>>2
    v_and_b32 v19, 1, v4                  ; nh
    v_and_b32 v15, 3, v3
    v_lshlrev_b32 v15, 3, v15
    v_lshl_add_u32 v19, v19, 5, v15       ; nh*32 + (i&3)*8
    v_lshl_add_u32 v17, v2, 2, v18
    v_lshl_add_u32 v17, v17, 7, v19
    v_lshrrev_b32 v16, 3, v3
    v_lshl_add_u32 v12, v16, 6, v17
    s_lshl_b32 s50, s49, 13
    s_lshl_b32 s51, s45, 14
    s_add_u32 s50, s50, s51
    s_add_u32 s50, s50, {W2LDS}
    v_add_u32 v12, s50, v12
    v_xor_b32 v13, 64, v12
    s_lshl_b32 s50, s40, 3
    v_mov_b32 v17, s50
    v_xor_b32 v16, 8, v17
    v_mov_b32 v5, 0
    s_cmp_eq_u32 s60, 0
    s_cbranch_scc1 L_g2setup
    """)
    a(f"""
    s_mov_b32 s22, 1835008
    s_mov_b32 s23, 0x20000
    s_mov_b32 s26, 3584
    s_mov_b32 s27, 0x20000
    s_mov_b32 s30, 896
    s_mov_b32 s31, 0x20000
    s_lshl_b32 s50, s43, 8
    s_lshl_b32 s51, s49, 7
    s_add_u32 s50, s50, s51
    s_lshl_b32 s51, s45, 7
    s_lshl_b32 s52, s49, 6
    s_add_u32 s51, s51, s52
    v_lshlrev_b32 v6, 3, v2
    s_waitcnt lgkmcnt(0)
    """)
    stamp(1)
    for tf in range(2):
        for g in range(4):
            r = 32 + 8*tf + 2*g
            a(f"buffer_load_dwordx2 v[{r}:{r+1}], v6, s[24:27], s50 offen offset:{64*tf+16*g}")
    for g in range(4):
        a(f"buffer_load_dwordx2 v[{20+2*g}:{21+2*g}], v6, s[28:31], s51 offen offset:{16*g}")
    a(f"""
    s_lshl_b32 s50, s41, 2
    s_or_b32 s50, s50, s3
    s_cmp_lg_u32 s50, 3
    s_cbranch_scc1 L_notag
    s_memrealtime s[56:57]
    s_waitcnt lgkmcnt(0)
    s_and_b32 s56, s56, -16
    s_or_b32 s56, s56, 16
    v_mov_b32 v28, s56
    v_mov_b32 v29, s57
    s_mov_b64 exec, 1
    buffer_store_dwordx2 v[28:29], v17, s[32:35], 0 offen sc1
    s_mov_b64 exec, -1
    L_notag:
    s_lshl_b32 s50, s48, 12
    v_lshlrev_b32 v6, 7, v1
    v_add_u32 v6, s50, v6
    v_bfe_u32 v10, v1, 1, 3
    v_xor_b32 v10, v10, v2
    v_lshl_add_u32 v6, v10, 4, v6
    v_xor_b32 v7, 32, v6
    v_xor_b32 v8, 64, v6
    v_xor_b32 v9, 96, v6
    v_lshl_add_u32 v11, v2, 3, v18
    v_lshl_add_u32 v11, v11, 8, v19
    v_add_u32 v11, 16384, v11
    s_lshl_b32 s50, s49, 1
    v_xor_b32 v10, s50, v18
    v_lshl_add_u32 v10, v10, 6, v11
    v_xor_b32 v11, 64, v10
    """)
    if fast:
        a(f"""
        s_getreg_b32 s39, hwreg(HW_REG_XCC_ID)
        v_min_u32 v15, 6, v0
        v_lshlrev_b32 v15, 3, v15
        s_lshl_b32 s52, s38, 7
        s_add_u32 s52, s52, {PRES}
        s_and_b32 s39, s39, 7
        s_or_b32 s39, s39, 8
        s_cmp_eq_u32 s3, 3
        s_cselect_b32 s37, 1, 6
        """)
    a("s_waitcnt vmcnt(4)")
    for tf in range(2):
        for g in range(4):
            for d in range(2):
                src = 32 + 8*tf + 2*g + d
                r0 = 64 + 16*tf + 4*g + 2*d
                a(f"v_lshlrev_b32 v{r0}, 16, v{src}")
                a(f"v_and_b32 v{r0+1}, 0xffff0000, v{src}")
                a(f"v_lshlrev_b32 v{r0+32}, 16, v{src}")
                a(f"v_and_b32 v{r0+33}, 0xffff0000, v{src}")
    def rd_w(s, base, tf):
        a(f"ds_read_b64_tr_b16 v[{base+8+4*tf}:{base+9+4*tf}], v{10+tf} offset:{(16*s)*256}")
        a(f"ds_read_b64_tr_b16 v[{base+10+4*tf}:{base+11+4*tf}], v{10+tf} offset:{(16*s+4)*256}")
    def rd_x(s, base, aa):
        a(f"ds_read_b128 v[{base+4*aa}:{base+3+4*aa}], v{6+s} offset:{8192*aa}")
    def mf1(base, aa, tf):
        acc = 64 + 32*aa + 16*tf
        a(f"v_mfma_f32_32x32x16_bf16 v[{acc}:{acc+15}], v[{base+8+4*tf}:{base+11+4*tf}], v[{base+4*aa}:{base+3+4*aa}], v[{acc}:{acc+15}]")
    def step1(cur, nxt, ns):
        a("s_waitcnt lgkmcnt(3)"); mf1(cur,0,0); rd_w(ns,nxt,0); rd_x(ns,nxt,0)
        a("s_waitcnt lgkmcnt(4)"); mf1(cur,0,1); rd_w(ns,nxt,1)
        a("s_waitcnt lgkmcnt(5)"); mf1(cur,1,0); rd_x(ns,nxt,1)
        mf1(cur,1,1)
    A, B = 32, 48
    a(f"""
    s_mov_b32 s54, 0
    s_mov_b32 s55, 0
    s_barrier                              ; B_0
    """)
    stamp(2)
    rd_w(0,A,0); rd_x(0,A,0); rd_w(0,A,1); rd_x(0,A,1)
    a.label("L_k1")
    step1(A, B, 1)
    step1(B, A, 2)
    step1(A, B, 3)
    a(f"""
    s_cmp_eq_u32 s55, 0
    s_cselect_b32 s50, 98304, 0
    s_sub_u32 s50, s50, 32768
    s_add_u32 s55, s55, s50
    s_add_u32 s54, s54, 1
    s_waitcnt lgkmcnt(3)
    """)
    mf1(B,0,0)
    a(f"""
    v_add_u32 v6, s50, v6
    v_add_u32 v7, s50, v7
    v_add_u32 v8, s50, v8
    v_add_u32 v9, s50, v9
    v_add_u32 v10, s50, v10
    v_add_u32 v11, s50, v11
    s_cmp_eq_u32 s54, 7
    s_waitcnt lgkmcnt(0)
    """)
    mf1(B,0,1)
    a("s_cbranch_scc1 L_k1_done")
    if k1st:
        for c in range(1,6):
            a(f"s_cmp_eq_u32 s54, {c}\ns_cbranch_scc0 L_ks{c}\ns_memtime s[{64+2*(2+2*c)}:{65+2*(2+2*c)}]\nL_ks{c}:")
    a("s_barrier                              ; B_(c+1)")
    if k1st:
        for c in range(1,6):
            a(f"s_cmp_eq_u32 s54, {c}\ns_cbranch_scc0 L_kt{c}\ns_memtime s[{64+2*(3+2*c)}:{65+2*(3+2*c)}]\nL_kt{c}:")
    rd_w(0,A,0); rd_x(0,A,0)
    mf1(B,1,0)
    rd_w(0,A,1)
    mf1(B,1,1)
    rd_x(0,A,1)
    if not fast:
        a(f"""
        s_cmp_eq_u32 s54, 5
        s_cbranch_scc0 L_k1
        buffer_load_dwordx2 v[30:31], v17, s[32:35], 0 offen sc1
        s_branch L_k1
        """)
    else:
        a(f"""
        s_cmp_eq_u32 s54, s37
        s_cbranch_scc0 L_k1
        s_add_u32 s37, s37, 2
        s_cmp_eq_u32 s54, 3
        s_cbranch_scc1 L_ev3
        buffer_load_dwordx2 v[30:31], v17, s[32:35], 0 offen sc1
        s_cmp_eq_u32 s54, 1
        s_cbranch_scc1 L_k1
        buffer_load_dwordx2 v[28:29], v15, s[16:19], s52 offen sc1
        s_branch L_k1
        L_ev3:
        s_add_u32 s37, s37, 1
        s_waitcnt vmcnt(0)
        v_readfirstlane_b32 s56, v30
        v_or_b32 v30, s39, v30
        s_lshl_b32 s51, s45, 3
        s_add_u32 s50, s52, s51
        s_cmp_eq_u32 s56, 0
        s_cbranch_scc1 L_k1
        s_mov_b64 exec, 1
        buffer_store_dwordx2 v[30:31], v5, s[16:19], s50 offen sc1
        s_mov_b64 exec, -1
        s_branch L_k1
        """)
    a.label("L_k1_done")
    mf1(B,1,0); mf1(B,1,1)
    stamp(3)
    a(f"""
    s_mov_b32 s56, {f32bits(C2):#x}
    s_mov_b32 s57, {f32bits(C1):#x}
    s_lshl_b32 s50, s42, 2
    s_add_u32 s50, s50, s48
    s_mul_i32 s50, s50, 112
    s_lshl_b32 s51, s43, 3
    s_add_u32 s50, s50, s51
    s_lshl_b32 s51, s49, 2
    s_add_u32 s50, s50, s51
    s_lshl_b32 s50, s50, 10
    s_mul_i32 s53, s36, {2*112*1024}
    s_add_u32 s51, s50, s53
    s_add_u32 s50, s50, {2*112*1024}
    s_sub_u32 s50, s50, s53
    s_lshl_b32 s53, s38, 9
    s_lshl_b32 s54, s94, 6
    s_add_u32 s53, s53, s54
    s_lshl_b32 s54, s45, 3
    s_add_u32 s53, s53, s54
    s_add_u32 s53, s53, {FLAGOFF}
    """)
    slowblocks = []
    if fast:
        a(f"""
        s_waitcnt vmcnt(0)
        v_or_b32 v32, s39, v30
        v_mov_b32 v33, v31
        v_cmp_ne_u64 vcc, v[32:33], v[28:29]
        v_cmp_eq_u32 s[54:55], 0, v30
        s_nop 3
        s_or_b64 vcc, vcc, s[54:55]
        """)
    def hstore(nm, ins):
        if not fast:
            a(ins + " sc1")
        else:
            a(f"s_cbranch_vccnz L_sl{nm}\n{ins}\nL_bk{nm}:")
            slowblocks.append(f"L_sl{nm}:\n{ins} sc1\ns_branch L_bk{nm}")
    H = 128
    def flagstore(nm, off, cnt):
        a(f"""
        s_waitcnt vmcnt({cnt})
        L_tg{nm}:
        v_readfirstlane_b32 s54, v30
        s_add_u32 s59, s59, 1
        s_cmp_gt_u32 s59, {SPIN}
        s_cbranch_scc1 L_tg{nm}ok
        s_cmp_lg_u32 s54, 0
        s_cbranch_scc1 L_tg{nm}ok
        buffer_load_dwordx2 v[30:31], v17, s[32:35], 0 offen sc1
        s_waitcnt vmcnt(0)
        s_branch L_tg{nm}
        L_tg{nm}ok:
        s_mov_b64 exec, 1
        """)
        hstore("f"+nm, f"buffer_store_dwordx2 v[30:31], v5, s[16:19], s53 offen offset:{off}")
        a("s_mov_b64 exec, -1")
    grp = 0
    for aa in range(2):
        for tf in range(2):
            for half in range(2):
                x0 = 64 + 32*aa + 16*tf + 8*half
                T = 32 + 8*(grp & 1)
                k = 2*tf + half
                O = (H + 16 + 4*k) if aa == 0 else (H + 4*k)
                for p in range(4): a(f"v_pk_mul_f32 v[{T+2*p}:{T+2*p+1}], v[{x0+2*p}:{x0+2*p+1}], v[{x0+2*p}:{x0+2*p+1}]")
                for p in range(4): a(f"v_pk_fma_f32 v[{T+2*p}:{T+2*p+1}], v[{T+2*p}:{T+2*p+1}], s[56:57], s[56:57] op_sel:[0,0,1] op_sel_hi:[1,0,1]")
                for p in range(4): a(f"v_pk_mul_f32 v[{T+2*p}:{T+2*p+1}], v[{T+2*p}:{T+2*p+1}], v[{x0+2*p}:{x0+2*p+1}]")
                for e in range(8): a(f"v_exp_f32 v{T+e}, v{T+e}")
                for p in range(4): a(f"v_pk_add_f32 v[{T+2*p}:{T+2*p+1}], v[{T+2*p}:{T+2*p+1}], 1.0 op_sel_hi:[1,0]")
                for e in range(8): a(f"v_rcp_f32 v{T+e}, v{T+e}")
                for p in range(4): a(f"v_pk_mul_f32 v[{T+2*p}:{T+2*p+1}], v[{T+2*p}:{T+2*p+1}], v[{x0+2*p}:{x0+2*p+1}]")
                for p in range(4): a(f"v_cvt_pk_bf16_f32 v{O+p}, v{T+2*p}, v{T+2*p+1}")
                so = "s50" if aa == 0 else "s51"
                hstore(f"h{grp}", f"buffer_store_dwordx4 v[{O}:{O+3}], v14, s[16:19], {so} offen offset:{k*1024}")
                if grp == fs:
                    flagstore("s", 0, fs-3)
                    stamp(4)
                grp += 1
    stamp(5)
    a(f"""
    s_cmp_eq_u32 s49, 0
    s_cselect_b32 s54, -1, 0
    s_cselect_b32 s55, 0, -1
    """)
    for g in range(4):
        for d in range(2):
            src = 20 + 2*g + d
            r0 = 64 + 4*g + 2*d
            a(f"v_lshlrev_b32 v32, 16, v{src}")
            a(f"v_and_b32 v33, 0xffff0000, v{src}")
            a(f"v_and_b32 v{r0}, s54, v32")
            a(f"v_and_b32 v{r0+1}, s54, v33")
            a(f"v_and_b32 v{r0+16}, s55, v32")
            a(f"v_and_b32 v{r0+17}, s55, v33")
    a.label("L_g2setup")
    a(f"""
    v_min_u32 v15, 6, v0
    v_lshlrev_b32 v15, 3, v15
    s_lshl_b32 s52, s38, 9
    s_lshl_b32 s50, s60, 2
    s_add_u32 s50, s50, s94
    s_lshl_b32 s50, s50, 6
    s_add_u32 s52, s52, s50
    s_add_u32 s52, s52, {FLAGOFF}
    s_lshl_b32 s50, s42, 2
    s_lshl_b32 s51, s61, 1
    s_add_u32 s50, s50, s51
    s_add_u32 s50, s50, s48
    s_mul_i32 s50, s50, 112
    s_mul_i32 s51, s36, 56
    s_add_u32 s50, s50, s51
    s_lshl_b32 s51, s49, 2
    s_add_u32 s50, s50, s51
    s_lshl_b32 s50, s50, 10
    v_add_u32 v18, s50, v14
    s_mov_b32 s41, 16384
    s_lshl_b32 s50, s94, 12
    s_lshl_b32 s51, s60, 14
    s_add_u32 s51, s51, s50
    v_add_u32 v6, s51, v14
    v_xor_b32 v7, 8192, v6
    s_lshl_b32 s51, s3, 6
    s_add_u32 s51, s51, 32768
    v_mov_b32 v8, s51
    v_xor_b32 v9, 128, v8
    ds_write_b32 v8, v5
    s_lshl_b32 s95, s2, 15
    s_lshl_b32 s50, s94, 13
    s_add_u32 s95, s95, s50
    s_add_u32 s95, s95, {XOFF}
    """)
    offs = ["s46","s96","s97","s98","s99","s100","s101"]
    a("s_mov_b32 s54, s45")
    for j in range(7):
        a(f"s_lshl_b32 {offs[j]}, s54, 13")
        a("s_add_u32 s54, s54, 1\ns_cmp_eq_u32 s54, 7\ns_cselect_b32 s54, 0, s54")
    def hld_n(n):
        a(f"buffer_load_dwordx4 v[{H+4*n}:{H+4*n+3}], v18, s[16:19], {offs[n>>2]} offen offset:{1024*(n&3)} sc1")
    def poll_preload(nm, first, upto):
        a(f"""
        L_poll{nm}:
        buffer_load_dwordx2 v[26:27], v15, s[16:19], s52 offen sc1
        s_add_u32 s59, s59, 1
        s_waitcnt vmcnt(0)
        v_cmp_ne_u64 vcc, v[30:31], v[26:27]
        s_cmp_gt_u32 s59, {SPIN}
        s_cbranch_scc1 L_pollok{nm}
        s_cbranch_vccnz L_poll{nm}
        L_pollok{nm}:
        """)
        stamp(7)
        for n in range(4*first, upto): hld_n(n)
    def rd2(s, buf, t):
        base = 32 + 8*buf + 4*t
        a(f"ds_read_b64_tr_b16 v[{base}:{base+1}], v{12+t} offset:{(16*s)*128}")
        a(f"ds_read_b64_tr_b16 v[{base+2}:{base+3}], v{12+t} offset:{(16*s+8)*128}")
    def adv_lds():
        a(f"""
        s_add_u32 s54, s54, 1
        s_cmp_eq_u32 s54, 7
        s_cselect_b32 s54, 0, s54
        s_cselect_b32 s51, {-6*16384}, s41
        v_add_u32 v12, s51, v12
        v_add_u32 v13, s51, v13
        """)
    a(f"""
    s_cmp_eq_u32 s60, 0
    s_cbranch_scc1 L_isA
    """)
    flagstore("k", 256, 0)
    stamp(6)
    a("s_mov_b32 s54, s45\ns_branch L_skipA")
    a.label("L_isA")
    for r in range(64, 96): a(f"v_mov_b32 v{r}, 0")
    a(f"""
    L_tgA:
    buffer_load_dwordx2 v[30:31], v17, s[32:35], 0 offen sc1
    s_add_u32 s59, s59, 1
    s_waitcnt vmcnt(0)
    v_readfirstlane_b32 s56, v30
    s_cmp_gt_u32 s59, {SPIN}
    s_cbranch_scc1 L_tgAok
    s_cmp_eq_u32 s56, 0
    s_cbranch_scc1 L_tgA
    L_tgAok:
    """)
    poll_preload("A", 0, pre)
    if prio: a(f"s_setprio {prio}")
    a.label("L_skipA")
    a("s_waitcnt lgkmcnt(0)")
    a("s_barrier                              ; B_w2")
    stamp(8)
    for s_ in range(3): rd2(s_, s_, 0); rd2(s_, s_, 1)
    X = 96
    def inbox_loads():
        a("buffer_load_dword v28, v16, s[32:35], 0 offen sc1")
        for g in range(6):
            va = "v14" if g < 4 else "v19"
            a(f"buffer_load_dwordx4 v[{X+4*g}:{X+4*g+3}], {va}, s[16:19], s95 offen offset:{1024*(g&3)} sc1")
    def g2step(n, pre_):
        s_ = n & 3
        issued = min(28, pre_ + n)
        base = 32 + 8*s_
        more = n < 25
        if more and s_ == 1: adv_lds()
        rem = min(2, 27-n)
        if n < drain: a(f"s_waitcnt vmcnt({issued-n-1}) lgkmcnt({2+4*rem})")
        elif n == drain: a(f"s_waitcnt vmcnt(0) lgkmcnt({2+4*rem})")
        else: a(f"s_waitcnt lgkmcnt({2+4*rem})")
        a(f"v_mfma_f32_32x32x16_bf16 v[64:79], v[{base}:{base+3}], v[{H+4*n}:{H+4*n+3}], v[64:79]")
        if more: rd2((s_+3)&3, (s_+3)&3, 0)
        a(f"s_waitcnt lgkmcnt({4*rem + (2 if more else 0)})")
        a(f"v_mfma_f32_32x32x16_bf16 v[80:95], v[{base+4}:{base+7}], v[{H+4*n}:{H+4*n+3}], v[80:95]")
        if more: rd2((s_+3)&3, (s_+3)&3, 1)
        if pre_ + n < 28: hld_n(pre_ + n)
        if n == drain:
            a("s_cmp_eq_u32 s60, 0\ns_cbranch_scc1 L_noib")
            inbox_loads()
            a.label("L_noib")
    a("v_add_u32 v19, 4096, v14")
    a("s_cmp_eq_u32 s60, 0\ns_cbranch_scc1 L_skipB")
    poll_preload("B", 1, 28)
    for n in range(28-pre): g2step(n, 28)
    a("s_branch L_join")
    a.label("L_skipB")
    for n in range(28-pre): g2step(n, pre)
    a.label("L_join")
    for n in range(28-pre, 28): g2step(n, 28)
    stamp(9)
    a(f"""
    v_mov_b32 v10, 1
    s_cmp_eq_u32 s49, 0
    s_nop 7
    s_nop 3
    s_cbranch_scc1 L_sw0
    """)
    for g in range(4): a(f"ds_write_b128 v6, v[{64+4*g}:{67+4*g}] offset:{1024*g}")
    for r in range(16): a(f"v_mov_b32 v{48+r}, v{80+r}")
    a("s_branch L_sw1")
    a.label("L_sw0")
    for g in range(4): a(f"ds_write_b128 v6, v[{80+4*g}:{83+4*g}] offset:{1024*g}")
    for r in range(16): a(f"v_mov_b32 v{48+r}, v{64+r}")
    a.label("L_sw1")
    a(f"""
    s_waitcnt lgkmcnt(0)
    ds_write_b32 v9, v10
    L_swp:
    ds_read_b32 v11, v8
    s_add_u32 s59, s59, 1
    s_waitcnt lgkmcnt(0)
    v_readfirstlane_b32 s51, v11
    s_cmp_gt_u32 s59, {SPIN}
    s_cbranch_scc1 L_swpok
    s_cmp_eq_u32 s51, 0
    s_cbranch_scc1 L_swp
    L_swpok:
    """)
    for g in range(4): a(f"ds_read_b128 v[{32+4*g}:{35+4*g}], v7 offset:{1024*g}")
    a(f"""
    s_cmp_eq_u32 s60, 0
    s_cbranch_scc0 L_epiB
    s_xor_b32 s95, s95, 32768
    """)
    for g in range(6): a(f"v_mov_b32 v{X+4*g+3}, v30")
    done = 0
    for i in range(16):
        if i % 4 == 0: a(f"s_waitcnt lgkmcnt({3-i//4})")
        a(f"v_add_f32 v{X+4*(i//3)+i%3}, v{32+i}, v{48+i}")
        if i % 3 == 2 or i == 15:
            g = i//3
            va = "v14" if g < 4 else "v19"
            a(f"buffer_store_dwordx4 v[{X+4*g}:{X+4*g+3}], {va}, s[16:19], s95 offen offset:{1024*(g&3)} sc1")
    stamp(10)
    if wb:
        a(f"""
        s_or_b32 s50, s45, s94
        s_cmp_lg_u32 s50, 0
        s_cbranch_scc1 L_nowb
        buffer_wbl2 sc1
        s_waitcnt vmcnt(0)
        L_nowb:
        """)
    a("s_branch L_fin" if stamps else "s_endpgm")
    a.label("L_epiB")
    a(f"""
    s_lshl_b32 s50, s42, 7
    s_lshl_b32 s51, s36, 6
    s_add_u32 s50, s50, s51
    s_lshl_b32 s51, s48, 5
    s_add_u32 s50, s50, s51
    v_add_u32 v6, s50, v1
    v_mul_u32_u24 v6, 896, v6
    v_lshl_add_u32 v6, v2, 4, v6
    s_lshl_b32 s50, s45, 7
    s_lshl_b32 s51, s49, 6
    s_add_u32 s50, s50, s51
    """)
    for g in range(4):
        a(f"s_waitcnt lgkmcnt({3-g})")
        for h2 in range(2):
            r = 4*g + 2*h2
            a(f"v_pk_add_f32 v[{32+r}:{33+r}], v[{32+r}:{33+r}], v[{48+r}:{49+r}]")
    a(f"""
    L_xchk:
    s_waitcnt vmcnt(0)
    v_min3_u32 v48, v{X+3}, v{X+7}, v{X+11}
    v_min3_u32 v49, v{X+15}, v{X+19}, v{X+23}
    v_max3_u32 v50, v{X+3}, v{X+7}, v{X+11}
    v_max3_u32 v51, v{X+15}, v{X+19}, v{X+23}
    v_min3_u32 v48, v48, v49, v28
    v_max3_u32 v50, v50, v51, v28
    v_cmp_ne_u32 vcc, v48, v50
    v_cmp_eq_u32 s[52:53], 0, v28
    s_add_u32 s59, s59, 1
    s_cmp_gt_u32 s59, {SPIN}
    s_cbranch_scc1 L_xok
    s_or_b64 vcc, vcc, s[52:53]
    s_cbranch_scc0 L_xok
    s_sleep {xsleep}
    """)
    inbox_loads()
    a("s_branch L_xchk")
    a.label("L_xok")
    stamp(10)
    for i in range(16):
        a(f"v_add_f32 v{32+i}, v{32+i}, v{X+4*(i//3)+i%3}")
        if i % 2 == 1: a(f"v_cvt_pk_bf16_f32 v{80+i//2}, v{31+i}, v{32+i}")
    a(f"""
    s_nop 1
    v_permlane32_swap_b32 v80, v82
    v_permlane32_swap_b32 v81, v83
    v_permlane32_swap_b32 v84, v86
    v_permlane32_swap_b32 v85, v87
    s_nop 1
    buffer_store_dwordx4 v[80:83], v6, s[20:23], s50 offen {ost}
    buffer_store_dwordx4 v[84:87], v6, s[20:23], s50 offen offset:32 {ost}
    """)
    if stamps:
        a("s_waitcnt vmcnt(0)")
        stamp(11)
        a.label("L_fin")
        a(f"""
        s_memrealtime s[92:93]
        s_lshl_b32 s50, s2, 3
        s_add_u32 s50, s50, s3
        s_lshl_b32 s50, s50, 7
        s_add_u32 s50, s50, {STAMPOFF}
        v_mov_b32 v20, s50
        s_waitcnt lgkmcnt(0)
        """)
        for i in range(16):
            r = 62 + 2*i
            a(f"v_mov_b32 v22, s{r}\nv_mov_b32 v23, s{r+1}\nbuffer_store_dwordx2 v[22:23], v20, s[16:19], 0 offen offset:{8*i}\ns_nop 1")
    a.label("L_end")
    a("s_endpgm")
    for b in slowblocks: a(b)
    a.label("L_code_end")
    t = file_text([f"@launch grid=({NWG},1,1) block=(512,1,1) lds=163840"], [kernel_text(K, a.text(), 240)])
    open(out, "w").write(t)

if __name__ == "__main__":
    kw = dict(x.split("=") for x in sys.argv[1:])
    for k in ("stamps","codepf","k1st"):
        if k in kw: kw[k] = kw[k] == "1"
    for k in ("pace","pace1","xsleep","prio","pre","drain","fs","tlb","fast","wb"):
        if k in kw: kw[k] = int(kw[k])
    gen(**kw)
```

```python
import sys, math, struct
from asmlib import *

def f32bits(x): return struct.unpack("<I", struct.pack("<f", x))[0]
C1 = -2.0*math.sqrt(2.0/math.pi)*math.log2(math.e)
C2 = C1*0.044715
FLAGOFF = 8<<20
GFLAG   = (8<<20) + 262144
XOFF    = 9<<20
STAMPOFF = 128<<20
SPIN = 0x40000
UNIT0 = 49152
SYNC = 40960
NXS = 5

def gen(out="k12.s", stamps=False, NWG=224, ost="", codepf=True, pace=6, xsleep=0, drain=26, helpers=1, gstep=8, psleep=1,
        nloc=40, kstr=2, gate=1, pk=0, burst=1, kprio=1, sprio=2, rts=0, evit=4):
    a = Asm()
    K = NAME + "_kernel"
    ost = ost.replace("_"," ")
    def stamp(n):
        if stamps: a(f"s_memtime s[{64+2*n}:{65+2*n}]")
    def mod7(dst, src, tmp):
        a(f"s_mul_i32 {tmp}, {src}, 37\ns_lshr_b32 {tmp}, {tmp}, 8\ns_mul_i32 {tmp}, {tmp}, 7\ns_sub_u32 {dst}, {src}, {tmp}")
    def lds1(ins): a(f"s_mov_b64 exec, 1\n{ins}\ns_mov_b64 exec, -1")
    a(f"""
    s_cmp_ge_u32 s2, {NWG}
    s_cbranch_scc1 {"L_helper" if helpers else "L_end"}
    s_load_dwordx2 s[4:5], s[0:1], 0
    s_load_dwordx2 s[8:9], s[0:1], 8
    s_load_dwordx2 s[12:13], s[0:1], 24
    s_load_dwordx2 s[16:17], s[0:1], 56
    s_load_dwordx2 s[20:21], s[0:1], 40
    s_load_dwordx2 s[24:25], s[0:1], 16
    s_load_dwordx2 s[28:29], s[0:1], 32
    s_load_dwordx2 s[32:33], s[0:1], 48
    """)
    if stamps: a("s_memrealtime s[62:63]")
    stamp(0)
    a(f"""
    v_lshrrev_b32 v1, 6, v0
    v_and_b32 v0, 63, v0                  ; lane
    s_and_b32 s40, s2, 7                  ; g8
    v_readfirstlane_b32 s3, v1            ; wave
    s_lshr_b32 s41, s2, 3                 ; slot 0..27
    s_and_b32 s36, s40, 1                 ; xf
    s_lshr_b32 s37, s40, 1                ; xm
    s_mul_i32 s44, s41, 37
    s_lshr_b32 s44, s44, 8
    s_mul_i32 s51, s44, 7
    s_sub_u32 s45, s41, s51               ; e
    s_lshl_b32 s42, s37, 2
    s_add_u32 s42, s42, s44               ; mi
    s_mul_i32 s43, s36, 7
    s_add_u32 s43, s43, s45               ; fj
    s_and_b32 s94, s3, 3                  ; r
    s_mov_b32 s18, 0x10000000
    s_mov_b32 s19, 0x20000
    s_mov_b32 s59, 0
    s_cmp_lt_u32 s3, 8
    s_cbranch_scc1 L_compute
    """)
    a(f"""
    s_mov_b32 s6, 1835008
    s_mov_b32 s7, 0x20000
    s_mov_b32 s10, 1605632
    s_mov_b32 s11, 0x20000
    s_mov_b32 s14, 1605632
    s_mov_b32 s15, 0x20000
    s_lshl_b32 s50, s44, 1
    s_add_u32 s50, s50, s37
    s_add_u32 s50, s50, s45
    s_mul_i32 s51, s36, 3
    s_add_u32 s50, s50, s51
    """)
    mod7("s53", "s50", "s51")
    a(f"""
    v_lshrrev_b32 v1, 3, v0               ; l>>3
    v_lshrrev_b32 v2, 4, v0               ; l>>4
    v_and_b32 v3, 7, v0                   ; l&7
    v_and_b32 v4, 15, v0                  ; l&15
    s_xor_b32 s51, s36, 1
    s_lshl_b32 s51, s51, 6
    s_lshl_b32 s50, s42, 7
    s_add_u32 s50, s50, s51
    s_lshl_b32 s51, s94, 4
    s_add_u32 s50, s50, s51
    v_add_u32 v5, s50, v1
    v_mul_u32_u24 v5, 896, v5
    v_xor_b32 v6, v3, v2
    v_lshl_add_u32 v20, v6, 4, v5
    v_xor_b32 v6, 4, v6
    v_lshl_add_u32 v21, v6, 4, v5
    v_add_u32 v21, {8*896-1024}, v21
    s_lshl_b32 s50, s94, 4
    v_add_u32 v5, s50, v2
    v_mul_u32_u24 v5, 3584, v5
    v_lshlrev_b32 v6, 2, v2
    v_xor_b32 v6, v6, v4
    v_lshl_add_u32 v24, v6, 4, v5
    s_lshl_b32 s50, s43, 8
    v_add_u32 v24, s50, v24
    v_add_u32 v25, {4*3584-1024}, v24
    v_add_u32 v26, {2*(4*3584-1024)}, v24
    v_add_u32 v27, {3*(4*3584-1024)}, v24
    s_lshl_b32 s57, s94, 11
    s_lshl_b32 s58, s94, 12
    s_add_u32 s58, s58, {UNIT0}
    s_mov_b32 s54, 0
    s_mov_b32 s55, s57
    s_mov_b32 s56, s58
    s_waitcnt lgkmcnt(0)
    """)
    stamp(1)
    def xload(so, paced=True):
        w = f"s_waitcnt vmcnt({pace})\n" if paced else ""
        a(f"{w}buffer_load_dwordx4 v20, s[4:7], {so} offen lds")
        a(f"{w}buffer_load_dwordx4 v21, s[4:7], {so} offen offset:1024 lds")
    def nextk():
        a(f"s_add_u32 s53, s53, {kstr}\ns_cmp_ge_u32 s53, 7\ns_cselect_b32 s52, 7, 0\ns_sub_u32 s53, s53, s52")
    a.label("L_ld_loop")
    a(f"""
    s_lshl_b32 s50, s53, 7                ; x soffset
    s_mul_i32 s51, s53, {64*3584}         ; w1 soffset
    s_mov_b32 m0, s55
    """)
    nextk()
    xload("s50")
    a(f"s_mov_b32 m0, s56\ns_add_u32 s56, s56, 16384\ns_add_u32 s55, s55, 8192\ns_add_u32 s54, s54, 1")
    for i in range(4):
        a(f"s_waitcnt vmcnt({pace})\nbuffer_load_dwordx4 v{24+i}, s[8:11], s51 offen offset:{1024*i} lds")
    a(f"""
    s_cmp_eq_u32 s54, {NXS}
    s_cselect_b32 s55, s57, s55
    s_cmp_eq_u32 s54, 1
    s_cbranch_scc1 L_ld_loop
    s_waitcnt vmcnt(6)
    """)
    if stamps:
        for c, n in ((2,11),(3,12),(7,13)):
            a(f"s_cmp_eq_u32 s54, {c}\ns_cbranch_scc0 L_st{c}\ns_memtime s[{64+2*n}:{65+2*n}]\nL_st{c}:")
    a(f"""
    s_barrier                              ; B_(issued-2)
    s_cmp_lt_u32 s54, 7
    s_cbranch_scc1 L_ld_loop
    s_lshl_b32 s50, s36, 1
    s_sub_u32 s50, s50, 1
    s_mul_i32 s50, s50, {64*896}
    v_add_u32 v20, s50, v20
    v_add_u32 v21, s50, v21
    """)
    def xk(j):
        a(f"s_lshl_b32 s50, s53, 7\ns_add_u32 m0, s57, {8192*((7+j) % NXS)}")
        nextk()
        xload("s50", False)
    xk(0); xk(1)
    a("s_waitcnt vmcnt(4)\ns_barrier                              ; B_6")
    xk(2)
    a(f"""
    s_lshl_b32 s50, s94, 5
    v_add_u32 v5, s50, v1
    v_mul_u32_u24 v5, 896, v5
    v_and_b32 v6, 1, v2
    v_lshlrev_b32 v6, 2, v6
    v_xor_b32 v6, v6, v3
    v_lshl_add_u32 v24, v6, 4, v5
    s_lshl_b32 s50, s45, 7
    s_mul_i32 s51, s36, {896*896}
    s_add_u32 s50, s50, s51
    v_add_u32 v24, s50, v24
    v_add_u32 v25, {8*896-1024}, v24
    v_add_u32 v26, {2*(8*896-1024)}, v24
    v_add_u32 v27, {3*(8*896-1024)}, v24
    v_and_b32 v19, 3, v0
    v_lshlrev_b32 v19, 2, v19
    v_add_u32 v19, {SYNC}, v19
    s_lshl_b32 s50, s3, 2
    s_add_u32 s50, s50, {SYNC}
    v_mov_b32 v8, s50
    s_mov_b32 s56, s45
    s_waitcnt vmcnt(0)
    s_barrier
    """)
    def cntwait(nm, off, need, sleep, tmp):
        a(f"""
        L_cw{nm}:
        ds_read_b32 v{tmp}, v19 offset:{off}
        s_add_u32 s59, s59, 1
        s_waitcnt lgkmcnt(0)
        v_cmp_gt_u32 vcc, {need}, v{tmp}
        s_cmp_gt_u32 s59, {SPIN}
        s_cbranch_scc1 L_cw{nm}ok
        s_cbranch_vccz L_cw{nm}ok
        s_sleep {sleep}
        s_branch L_cw{nm}
        L_cw{nm}ok:
        """)
    def lpub(v): a(f"v_mov_b32 v10, {v}"); lds1("ds_write_b32 v8, v10")
    xk(3); xk(4)
    a("s_waitcnt vmcnt(0)"); lpub(1)
    for j in range(7):
        cntwait(f"w{j}", 16, j+1, 0, 12)
        if j < 2: xk(5+j)
        a(f"s_add_u32 m0, s58, {16384*j}\ns_mul_i32 s50, s56, {128*896}\ns_add_u32 s56, s56, 1\ns_cmp_eq_u32 s56, 7\ns_cselect_b32 s56, 0, s56")
        for i in range(4):
            a(f"buffer_load_dwordx4 v{24+i}, s[12:15], s50 offen offset:{1024*i} lds")
        if j == 1:
            a("s_waitcnt vmcnt(4)"); lpub(2)
    stamp(2)
    a("s_waitcnt vmcnt(0)"); lpub(3)
    stamp(8)
    a("s_branch L_fin" if stamps else "s_endpgm")
    a.label("L_compute")
    a(f"""
    s_mov_b32 s26, 3584
    s_mov_b32 s27, 0x20000
    s_mov_b32 s30, 896
    s_mov_b32 s31, 0x20000
    s_bfe_u32 s49, s3, 0x10001
    s_lshl_b32 s50, s43, 8
    s_lshl_b32 s51, s49, 7
    s_add_u32 s54, s50, s51
    s_lshl_b32 s51, s45, 7
    s_lshl_b32 s52, s49, 6
    s_add_u32 s55, s51, s52
    v_lshrrev_b32 v2, 5, v0               ; hi
    v_lshlrev_b32 v6, 3, v2
    """)
    if codepf:
        a(f"""
        s_sub_u32 s50, s3, 4
        s_cmp_gt_u32 s50, 1
        s_cbranch_scc1 L_nocpf
        s_cmp_lg_u32 s45, 0
        s_cbranch_scc1 L_nocpf
        s_getpc_b64 s[56:57]
        s_lshl_b32 s50, s50, 13
        v_lshlrev_b32 v5, 7, v0
        v_add_u32 v5, s50, v5
        v_min_u32 v5, L_code_end-L_compute-256, v5
        global_load_dword v31, v5, s[56:57]
        L_nocpf:
        """)
    a("s_waitcnt lgkmcnt(0)")
    stamp(1)
    for tf in range(2):
        for g in range(4):
            r = 32 + 8*tf + 2*g
            a(f"buffer_load_dwordx2 v[{r}:{r+1}], v6, s[24:27], s54 offen offset:{64*tf+16*g}")
    for g in range(4):
        a(f"buffer_load_dwordx2 v[{20+2*g}:{21+2*g}], v6, s[28:31], s55 offen offset:{16*g}")
    offs = ["s46","s96","s97","s98","s99","s100","s101"]
    a(f"""
    s_lshr_b32 s60, s3, 2
    v_lshlrev_b32 v14, 2, v0
    v_add_u32 v14, {SYNC}, v14
    v_mov_b32 v5, 0
    ds_write_b32 v14, v5
    s_and_b32 s48, s3, 1                  ; tm
    s_xor_b32 s61, s60, s36
    s_xor_b32 s61, s61, 1                 ; R
    s_lshl_b32 s38, s40, 2
    s_add_u32 s38, s38, s44               ; team
    s_mov_b32 s22, 1835008
    s_mov_b32 s23, 0x20000
    s_mov_b32 s34, 256
    s_mov_b32 s35, 0x20000
    s_lshl_b32 s52, s40, 3
    v_mov_b32 v17, s52
    s_lshl_b32 s50, s41, 3
    s_or_b32 s50, s50, s3
    s_cmp_lg_u32 s50, 7
    s_cbranch_scc1 L_notag
    s_memrealtime s[56:57]
    s_waitcnt lgkmcnt(0)
    s_or_b32 s56, s56, 1
    v_mov_b32 v30, s56
    v_mov_b32 v31, s57
    s_mov_b64 exec, 1
    buffer_store_dwordx2 v[30:31], v17, s[32:35], 0 offen sc1
    s_mov_b64 exec, -1
    L_notag:
    v_and_b32 v1, 31, v0                  ; l&31
    v_and_b32 v3, 15, v0                  ; i
    v_lshrrev_b32 v4, 4, v0               ; q
    v_lshlrev_b32 v14, 4, v0              ; lane*16
    v_lshrrev_b32 v28, 2, v3              ; i>>2
    v_and_b32 v29, 1, v4                  ; nh
    v_and_b32 v15, 3, v3
    v_lshlrev_b32 v15, 3, v15
    v_lshl_add_u32 v29, v29, 5, v15       ; nh*32 + (i&3)*8
    s_mul_i32 s55, s60, {7 % NXS}
    s_lshl_b32 s50, s48, 12
    s_lshl_b32 s51, s55, 13
    s_add_u32 s50, s50, s51
    v_lshlrev_b32 v6, 7, v1
    v_add_u32 v6, s50, v6
    v_bfe_u32 v10, v1, 1, 3
    v_xor_b32 v10, v10, v2
    v_lshl_add_u32 v6, v10, 4, v6
    v_xor_b32 v7, 32, v6
    v_xor_b32 v8, 64, v6
    v_xor_b32 v9, 96, v6
    v_lshl_add_u32 v11, v2, 3, v28
    v_lshl_add_u32 v11, v11, 8, v29
    v_add_u32 v11, {UNIT0}, v11
    s_lshl_b32 s50, s49, 1
    v_xor_b32 v10, s50, v28
    v_lshl_add_u32 v10, v10, 6, v11
    v_xor_b32 v11, 64, v10
    v_lshl_add_u32 v18, v2, 2, v28
    v_lshl_add_u32 v18, v18, 7, v29
    v_lshrrev_b32 v16, 3, v3
    v_lshl_add_u32 v12, v16, 6, v18
    s_lshl_b32 s50, s49, 13
    s_add_u32 s50, s50, {UNIT0}
    v_add_u32 v12, s50, v12
    v_xor_b32 v13, 64, v12
    v_xor_b32 v16, 8, v17
    v_and_b32 v19, 3, v0
    v_lshlrev_b32 v19, 2, v19
    v_add_u32 v19, {SYNC}, v19
    v_min_u32 v160, 6, v0
    v_lshlrev_b32 v161, 3, v160
    v_lshlrev_b32 v160, 7, v160
    s_lshl_b32 s47, s38, 9
    s_lshl_b32 s50, s3, 6
    s_add_u32 s47, s47, s50
    s_lshl_b32 s39, s47, 4
    s_add_u32 s39, s39, {GFLAG}
    s_add_u32 s47, s47, {FLAGOFF}
    s_lshl_b32 s50, s45, 3
    s_add_u32 s58, s47, s50
    s_lshl_b32 s50, s45, 7
    s_add_u32 s37, s39, s50
    s_lshl_b32 s50, s42, 2
    s_lshl_b32 s51, s61, 1
    s_add_u32 s50, s50, s51
    s_add_u32 s50, s50, s48
    s_mul_i32 s50, s50, 112
    s_mul_i32 s51, s36, 56
    s_add_u32 s50, s50, s51
    s_lshl_b32 s51, s49, 2
    s_add_u32 s50, s50, s51
    s_lshl_b32 s50, s50, 10
    v_add_u32 v18, s50, v14               ; h base
    s_lshl_b32 s51, s3, 12
    v_add_u32 v162, s51, v14
    v_xor_b32 v163, 8192, v162
    s_lshl_b32 s51, s3, 2
    s_add_u32 s51, s51, {SYNC}
    v_mov_b32 v164, s51
    v_xor_b32 v165, 8, v164
    v_xor_b32 v166, 16, v164
    v_mov_b32 v167, 1
    s_lshl_b32 s95, s2, 15
    s_lshl_b32 s50, s94, 13
    s_add_u32 s95, s95, s50
    s_add_u32 s95, s95, {XOFF}
    s_mov_b32 s54, s45
    """)
    for j in range(7):
        a(f"s_lshl_b32 {offs[j]}, s54, 13")
        if j < 6: a("s_add_u32 s54, s54, 1\ns_cmp_eq_u32 s54, 7\ns_cselect_b32 s54, 0, s54")
    a(f"""
    s_mov_b32 s56, {f32bits(C2):#x}
    s_mov_b32 s57, {f32bits(C1):#x}
    s_mov_b32 s54, 0
    s_mov_b32 s41, 16384
    s_mov_b32 s44, 8192
    s_waitcnt vmcnt(4)
    """)
    ACC = 80
    for tf in range(2):
        for g in range(4):
            for d in range(2):
                src = 32 + 8*tf + 2*g + d
                r0 = ACC + 16*tf + 4*g + 2*d
                a(f"v_lshlrev_b32 v{r0}, 16, v{src}")
                a(f"v_and_b32 v{r0+1}, 0xffff0000, v{src}")
    def rda(s):
        b = 32 + 12*s
        a(f"ds_read_b128 v[{b}:{b+3}], v{6+s}")
        a(f"ds_read_b64_tr_b16 v[{b+4}:{b+5}], v10 offset:{(16*s)*256}")
        a(f"ds_read_b64_tr_b16 v[{b+6}:{b+7}], v10 offset:{(16*s+4)*256}")
    def rdb(s):
        b = 32 + 12*s
        a(f"ds_read_b64_tr_b16 v[{b+8}:{b+9}], v11 offset:{(16*s)*256}")
        a(f"ds_read_b64_tr_b16 v[{b+10}:{b+11}], v11 offset:{(16*s+4)*256}")
    def mf1(s, tf):
        b = 32 + 12*s; acc = ACC + 16*tf
        a(f"v_mfma_f32_32x32x16_bf16 v[{acc}:{acc+15}], v[{b+4+4*tf}:{b+7+4*tf}], v[{b}:{b+3}], v[{acc}:{acc+15}]")
    a(f"""
    s_waitcnt lgkmcnt(0)
    s_barrier                              ; B_0
    s_cmp_eq_u32 s60, 0
    s_cbranch_scc1 L_go
    """)
    for i in range(1, 8):
        if i == evit + 1:
            a("buffer_load_dwordx2 v[30:31], v17, s[32:35], 0 offen sc1\nbuffer_load_dword v29, v5, s[16:19], s47 offen sc1")
        a(f"s_barrier                              ; B_{i}")
    if kprio: a(f"s_setprio {kprio}")
    a.label("L_go")
    stamp(2)
    for s_ in range(3): rda(s_); rdb(s_)
    a.label("L_k1")
    a("s_waitcnt lgkmcnt(12)"); mf1(0,0); rda(3)
    a(f"""
    s_add_u32 s54, s54, 1
    s_add_u32 s55, s55, 1
    s_cmp_eq_u32 s55, {NXS}
    s_cselect_b32 s55, 0, s55
    s_cselect_b32 s50, {-8192*(NXS-1)}, s44
    """)
    a("s_waitcnt lgkmcnt(13)"); mf1(0,1); rdb(3)
    a(f"""
    v_add_u32 v6, s50, v6
    v_add_u32 v7, s50, v7
    v_add_u32 v8, s50, v8
    v_add_u32 v9, s50, v9
    v_add_u32 v10, s41, v10
    v_add_u32 v11, s41, v11
    s_cmp_eq_u32 s54, 7
    """)
    a("s_waitcnt lgkmcnt(12)"); mf1(1,0)
    a(f"""
    s_cbranch_scc1 L_k1_last
    s_cmp_eq_u32 s60, 0
    s_cbranch_scc1 L_k1_s
    s_cmp_eq_u32 s54, 3
    s_cbranch_scc1 L_k1_k3
    s_cmp_eq_u32 s54, 5
    s_cbranch_scc1 L_k1_k5
    L_k1_back:
    """)
    rda(0)
    a("s_waitcnt lgkmcnt(13)"); mf1(1,1); rdb(0)
    a("s_waitcnt lgkmcnt(12)"); mf1(2,0); rda(1)
    a("s_waitcnt lgkmcnt(13)"); mf1(2,1); rdb(1)
    a("s_waitcnt lgkmcnt(12)"); mf1(3,0); rda(2)
    a("v_mov_b32 v4, s54")
    a("s_waitcnt lgkmcnt(13)"); mf1(3,1)
    a("s_waitcnt lgkmcnt(12)")
    lds1("ds_write_b32 v164, v4")
    rdb(2)
    a("s_branch L_k1")
    a.label("L_k1_last")
    a("s_waitcnt lgkmcnt(10)"); mf1(1,1)
    a("s_waitcnt lgkmcnt(7)"); mf1(2,0)
    a("s_waitcnt lgkmcnt(5)"); mf1(2,1)
    a("v_mov_b32 v4, 7\ns_cmp_eq_u32 s60, 0\ns_waitcnt lgkmcnt(0)")
    lds1("ds_write_b32 v164, v4")
    mf1(3,0)
    a("s_cbranch_scc0 L_k1_nb\ns_barrier                              ; B_7\nL_k1_nb:")
    mf1(3,1)
    stamp(3)
    a(f"s_setprio 0\nv_mov_b32 v48, s57\ns_nop 7")
    H = 112; NH = 12
    stores = []
    for grp in range(4):
        x0 = ACC + 8*grp
        T = 32 + 8*(grp & 1)
        O = H + 4*grp
        if pk:
            for p in range(4): a(f"v_pk_mul_f32 v[{T+2*p}:{T+2*p+1}], v[{x0+2*p}:{x0+2*p+1}], v[{x0+2*p}:{x0+2*p+1}]")
            for p in range(4): a(f"v_pk_fma_f32 v[{T+2*p}:{T+2*p+1}], v[{T+2*p}:{T+2*p+1}], s[56:57], s[56:57] op_sel:[0,0,1] op_sel_hi:[1,0,1]")
            for p in range(4): a(f"v_pk_mul_f32 v[{T+2*p}:{T+2*p+1}], v[{T+2*p}:{T+2*p+1}], v[{x0+2*p}:{x0+2*p+1}]")
            for e in range(8): a(f"v_exp_f32 v{T+e}, v{T+e}")
            for p in range(4): a(f"v_pk_add_f32 v[{T+2*p}:{T+2*p+1}], v[{T+2*p}:{T+2*p+1}], 1.0 op_sel_hi:[1,0]")
            for e in range(8): a(f"v_rcp_f32 v{T+e}, v{T+e}")
            for p in range(4): a(f"v_pk_mul_f32 v[{T+2*p}:{T+2*p+1}], v[{T+2*p}:{T+2*p+1}], v[{x0+2*p}:{x0+2*p+1}]")
        else:
            for e in range(8): a(f"v_mul_f32 v{T+e}, v{x0+e}, v{x0+e}")
            for e in range(8): a(f"v_fma_f32 v{T+e}, v{T+e}, s56, v48")
            for e in range(8): a(f"v_mul_f32 v{T+e}, v{T+e}, v{x0+e}")
            for e in range(8): a(f"v_exp_f32 v{T+e}, v{T+e}")
            for e in range(8): a(f"v_add_f32 v{T+e}, 1.0, v{T+e}")
            for e in range(8): a(f"v_rcp_f32 v{T+e}, v{T+e}")
            for e in range(8): a(f"v_mul_f32 v{T+e}, v{T+e}, v{x0+e}")
        for p in range(4): a(f"v_cvt_pk_bf16_f32 v{O+p}, v{T+2*p}, v{T+2*p+1}")
        ins = f"buffer_store_dwordx4 v[{O}:{O+3}], v18, s[16:19], s46 offen offset:{grp*1024} sc1"
        if burst: stores.append(ins)
        else: a(ins)
    for i_ in stores: a(i_)
    stamp(5)
    a(f"""
    s_lshl_b32 s50, s60, 1
    s_add_u32 s50, s50, s49
    s_cmp_eq_u32 s50, 2
    s_cselect_b32 s54, -1, 0
    s_cmp_eq_u32 s50, 3
    s_cselect_b32 s55, -1, 0
    """)
    for g in range(4):
        for d in range(2):
            src = 20 + 2*g + d
            r0 = ACC + 4*g + 2*d
            a(f"v_lshlrev_b32 v32, 16, v{src}")
            a(f"v_and_b32 v33, 0xffff0000, v{src}")
            a(f"v_and_b32 v{r0}, s54, v32")
            a(f"v_and_b32 v{r0+1}, s54, v33")
            a(f"v_and_b32 v{r0+16}, s55, v32")
            a(f"v_and_b32 v{r0+17}, s55, v33")
    a(f"""
    s_waitcnt vmcnt(0)
    L_tg:
    v_readfirstlane_b32 s50, v30
    s_add_u32 s59, s59, 1
    s_cmp_lg_u32 s50, 0
    s_cbranch_scc1 L_tgok
    s_cmp_gt_u32 s59, {SPIN}
    s_cbranch_scc1 L_tgok
    buffer_load_dwordx2 v[30:31], v17, s[32:35], 0 offen sc1
    s_waitcnt vmcnt(0)
    s_branch L_tg
    L_tgok:
    s_mov_b64 exec, 1
    buffer_store_dwordx2 v[30:31], v5, s[16:19], s58 offen
    s_mov_b64 exec, -1
    """)
    stamp(4)
    a(f"""
    s_mov_b64 s[56:57], -1
    s_mov_b32 s55, 0
    L_poll:
    s_add_u32 s55, s55, 1
    s_cmp_gt_u32 s55, {nloc}
    s_cbranch_scc1 L_pollg
    L_polll:
    buffer_load_dwordx2 v[26:27], v161, s[16:19], s47 offen sc1
    L_pollw:
    s_waitcnt vmcnt(0)
    v_cmp_ne_u64 vcc, v[30:31], v[26:27]
    s_cmp_gt_u32 s55, {SPIN}
    s_cbranch_scc1 L_pollok
    s_and_b64 s[56:57], s[56:57], vcc
    s_cbranch_scc0 L_pollok
    s_sleep {psleep}
    s_branch L_poll
    L_pollg:
    s_bitcmp1_b32 s55, 0
    s_cbranch_scc1 L_polll
    s_mov_b64 exec, 1
    buffer_store_dwordx2 v[30:31], v5, s[16:19], s37 offen sc1
    s_mov_b64 exec, -1
    buffer_load_dwordx2 v[26:27], v160, s[16:19], s39 offen sc1
    s_branch L_pollw
    L_pollok:
    """)
    stamp(7)
    def ldswait(nm, vaddr, off, sleep):
        a(f"""
        L_lw{nm}:
        ds_read_b32 v11, {vaddr} offset:{off}
        s_add_u32 s59, s59, 1
        s_waitcnt lgkmcnt(0)
        v_cmp_eq_u32 vcc, 0, v11
        s_cmp_gt_u32 s59, {SPIN}
        s_cbranch_scc1 L_lw{nm}ok
        s_cbranch_vccz L_lw{nm}ok
        {"s_sleep "+str(sleep) if sleep else ""}
        s_branch L_lw{nm}
        L_lw{nm}ok:
        """)
    a("s_cmp_eq_u32 s60, 0\ns_cbranch_scc1 L_nogate")
    if gate: ldswait("g", "v164", 128, 1)
    a("s_branch L_gated")
    a.label("L_nogate")
    if sprio: a(f"s_setprio {sprio}")
    a.label("L_gated")
    stamp(12)
    def hreg(n): return H + 4*(n % NH)
    def hld_n(n):
        a(f"buffer_load_dwordx4 v[{hreg(n)}:{hreg(n)+3}], v18, s[16:19], {offs[n>>2]} offen offset:{1024*(n&3)} sc1")
    for n in range(4, NH): hld_n(n)
    cntwait("2", 32, 3, 1, 32)
    stamp(8)
    def rd2(s, buf, t):
        base = 32 + 8*buf + 4*t
        a(f"ds_read_b64_tr_b16 v[{base}:{base+1}], v{12+t} offset:{(16*s)*128}")
        a(f"ds_read_b64_tr_b16 v[{base+2}:{base+3}], v{12+t} offset:{(16*s+8)*128}")
    for s_ in range(3): rd2(s_, s_, 0); rd2(s_, s_, 1)
    X = 64; NG = 3
    def inbox_loads():
        a("buffer_load_dword v28, v16, s[32:35], 0 offen sc1")
        for g in range(NG):
            a(f"buffer_load_dwordx4 v[{X+4*g}:{X+4*g+3}], v14, s[16:19], s95 offen offset:{1024*g} sc1")
    for n in range(28):
        s_ = n & 3
        issued = min(28, NH + n)
        base = 32 + 8*s_
        more = n < 25
        if more and s_ == 1: a("v_add_u32 v12, s41, v12\nv_add_u32 v13, s41, v13")
        rem = min(2, 27-n)
        if n < drain: a(f"s_waitcnt vmcnt({issued-n-1}) lgkmcnt({2+4*rem})")
        elif n == drain: a(f"s_waitcnt vmcnt(0) lgkmcnt({2+4*rem})")
        else: a(f"s_waitcnt lgkmcnt({2+4*rem})")
        a(f"v_mfma_f32_32x32x16_bf16 v[{ACC}:{ACC+15}], v[{base}:{base+3}], v[{hreg(n)}:{hreg(n)+3}], v[{ACC}:{ACC+15}]")
        if more: rd2((s_+3)&3, (s_+3)&3, 0)
        a(f"s_waitcnt lgkmcnt({4*rem + (2 if more else 0)})")
        a(f"v_mfma_f32_32x32x16_bf16 v[{ACC+16}:{ACC+31}], v[{base+4}:{base+7}], v[{hreg(n)}:{hreg(n)+3}], v[{ACC+16}:{ACC+31}]")
        if NH + n < 28: hld_n(NH + n)
        if more: rd2((s_+3)&3, (s_+3)&3, 1)
        if gate and n == gstep: lds1("ds_write_b32 v166, v167 offset:128")
        if n == drain:
            a("s_cmp_eq_u32 s60, 0\ns_cbranch_scc1 L_noib")
            inbox_loads()
            lds1("buffer_store_dwordx2 v[30:31], v5, s[16:19], s37 offen sc1")
            a.label("L_noib")
    stamp(9)
    a(f"""
    s_cmp_eq_u32 s49, 0
    s_nop 7
    s_nop 3
    s_cbranch_scc1 L_x0
    """)
    for g in range(4): a(f"ds_write_b128 v162, v[{ACC+4*g}:{ACC+3+4*g}] offset:{1024*g}")
    lds1("ds_write_b32 v165, v167 offset:64")
    for r in range(16): a(f"v_mov_b32 v{48+r}, v{ACC+16+r}")
    a("s_branch L_x1")
    a.label("L_x0")
    for g in range(4): a(f"ds_write_b128 v162, v[{ACC+16+4*g}:{ACC+19+4*g}] offset:{1024*g}")
    lds1("ds_write_b32 v165, v167 offset:64")
    for r in range(16): a(f"v_mov_b32 v{48+r}, v{ACC+r}")
    a.label("L_x1")
    ldswait("s", "v164", 64, 0)
    for g in range(4): a(f"ds_read_b128 v[{32+4*g}:{35+4*g}], v163 offset:{1024*g}")
    a(f"""
    s_cmp_eq_u32 s60, 0
    s_cbranch_scc0 L_epiB
    s_xor_b32 s95, s95, 32768
    """)
    for g in range(NG): a(f"v_mov_b32 v{X+4*g+3}, v30")
    for i in range(8):
        if i % 2 == 0: a(f"s_waitcnt lgkmcnt({3-i//2})")
        a(f"v_add_f32 v{32+2*i}, v{32+2*i}, v{48+2*i}")
        a(f"v_add_f32 v{33+2*i}, v{33+2*i}, v{49+2*i}")
        a(f"v_cvt_pk_bf16_f32 v{X+4*(i//3)+i%3}, v{32+2*i}, v{33+2*i}")
    for g in range(NG):
        a(f"buffer_store_dwordx4 v[{X+4*g}:{X+4*g+3}], v14, s[16:19], s95 offen offset:{1024*g} sc1")
    lds1("buffer_store_dwordx2 v[30:31], v5, s[16:19], s37 offen sc1")
    stamp(10)
    a("s_branch L_fin" if stamps else "s_endpgm")
    a.label("L_epiB")
    a(f"""
    s_lshl_b32 s50, s42, 7
    s_lshl_b32 s51, s36, 6
    s_add_u32 s50, s50, s51
    s_lshl_b32 s51, s48, 5
    s_add_u32 s50, s50, s51
    v_add_u32 v6, s50, v1
    v_mul_u32_u24 v6, 896, v6
    v_lshl_add_u32 v6, v2, 4, v6
    s_lshl_b32 s50, s45, 7
    s_lshl_b32 s51, s49, 6
    s_add_u32 s50, s50, s51
    """)
    for g in range(4):
        a(f"s_waitcnt lgkmcnt({3-g})")
        for h2 in range(2):
            r = 4*g + 2*h2
            a(f"v_pk_add_f32 v[{32+r}:{33+r}], v[{32+r}:{33+r}], v[{48+r}:{49+r}]")
    a(f"""
    L_xchk:
    s_waitcnt vmcnt(0)
    v_min3_u32 v48, v{X+3}, v{X+7}, v{X+11}
    v_max3_u32 v50, v{X+3}, v{X+7}, v{X+11}
    v_min_u32 v48, v48, v28
    v_max_u32 v50, v50, v28
    v_cmp_ne_u32 vcc, v48, v50
    v_cmp_eq_u32 s[52:53], 0, v28
    s_add_u32 s59, s59, 1
    s_cmp_gt_u32 s59, {SPIN}
    s_cbranch_scc1 L_xok
    s_or_b64 vcc, vcc, s[52:53]
    s_cbranch_scc0 L_xok
    s_sleep {xsleep}
    """)
    inbox_loads()
    a("s_branch L_xchk")
    a.label("L_xok")
    stamp(10)
    for i in range(8):
        src = X+4*(i//3)+i%3
        a(f"v_lshlrev_b32 v48, 16, v{src}")
        a(f"v_and_b32 v49, 0xffff0000, v{src}")
        a(f"v_pk_add_f32 v[{32+2*i}:{33+2*i}], v[{32+2*i}:{33+2*i}], v[48:49]")
        a(f"v_cvt_pk_bf16_f32 v{80+i}, v{32+2*i}, v{33+2*i}")
    a(f"""
    s_nop 1
    v_permlane32_swap_b32 v80, v82
    v_permlane32_swap_b32 v81, v83
    v_permlane32_swap_b32 v84, v86
    v_permlane32_swap_b32 v85, v87
    s_nop 1
    buffer_store_dwordx4 v[80:83], v6, s[20:23], s50 offen {ost}
    buffer_store_dwordx4 v[84:87], v6, s[20:23], s50 offen offset:32 {ost}
    """)
    if stamps:
        a("s_waitcnt vmcnt(0)")
        stamp(11)
        a.label("L_fin")
        a(f"""
        s_memrealtime s[92:93]
        s_mul_i32 s50, s2, 12
        s_add_u32 s50, s50, s3
        s_lshl_b32 s50, s50, 7
        s_add_u32 s50, s50, {STAMPOFF}
        v_mov_b32 v20, s50
        s_waitcnt lgkmcnt(0)
        """)
        for i in range(16):
            r = 62 + 2*i
            a(f"v_mov_b32 v22, s{r}\nv_mov_b32 v23, s{r+1}\nbuffer_store_dwordx2 v[22:23], v20, s[16:19], 0 offen offset:{8*i}\ns_nop 1")
    a.label("L_end")
    a("s_endpgm")
    a.label("L_k1_s")
    a(f"""
    s_barrier                              ; B_(c+1)
    s_cmp_lg_u32 s54, {evit}
    s_cbranch_scc1 L_k1_back
    buffer_load_dwordx2 v[30:31], v17, s[32:35], 0 offen sc1
    buffer_load_dword v29, v5, s[16:19], s47 offen sc1
    s_branch L_k1_back
    """)
    a.label("L_k1_k3")
    cntwait("k3", 32, 1, 0, 112)
    a("s_branch L_k1_back")
    a.label("L_k1_k5")
    cntwait("k5", 32, 2, 0, 112)
    a("s_branch L_k1_back")
    if helpers:
        a(f"""
        L_helper:
        s_cmp_ge_u32 s2, 256
        s_cbranch_scc1 L_end
        s_load_dwordx2 s[12:13], s[0:1], 24
        s_and_b32 s36, s2, 1
        s_sub_u32 s50, s2, {NWG}
        s_lshr_b32 s50, s50, 3
        s_mul_i32 s51, s36, {896*896}
        s_mul_i32 s50, s50, {224*896}
        s_add_u32 s50, s50, s51
        s_add_u32 s14, s50, {224*896}
        s_mov_b32 s15, 0x20000
        v_lshlrev_b32 v1, 7, v0                ; tid*128
        s_waitcnt lgkmcnt(0)
        """)
        for i in range(3):
            a(f"buffer_load_dword v{2+i}, v1, s[12:15], s50 offen")
            a(f"s_add_u32 s50, s50, {768*128}")
        a("s_waitcnt vmcnt(0)\ns_endpgm")
    a.label("L_code_end")
    t = file_text([f"@launch grid=({256 if helpers else NWG},1,1) block=(768,1,1) lds=163840"], [kernel_text(K, a.text(), 168)])
    open(out, "w").write(t)

if __name__ == "__main__":
    kw = dict(x.split("=") for x in sys.argv[1:])
    for k in list(kw):
        if k in ("stamps","codepf"): kw[k] = kw[k] == "1"
        elif k not in ("out","ost"): kw[k] = int(kw[k])
    gen(**kw)
```
